```python
import torch

def _softmax(x, axis=-1):
    return torch.softmax(x, dim=axis)
def _gelu(x):
    return torch.nn.functional.gelu(x, approximate="tanh")
def _silu(x):
    return torch.nn.functional.silu(x)
def _sigmoid(x):
    return torch.sigmoid(x)
def _layernorm(x, axis=-1, eps=1e-5):
    m = x.mean(dim=axis, keepdim=True)
    v = x.var(dim=axis, keepdim=True, unbiased=False)
    return (x - m) / torch.sqrt(v + eps)
def _scatter_add(tgt, idx, src, axis=0):
    return tgt.clone().index_add_(axis, idx, src)
def _segment_sum(src, seg, n):
    out = torch.zeros((n,) + src.shape[1:], dtype=src.dtype)
    return out.index_add_(0, seg, src)
def _pad(x, pw):
    flat = tuple(v for pair in reversed(pw) for v in pair)
    return torch.nn.functional.pad(x, flat)

kernel_name = 'interleave_layers__ssm_conv_h3__sliding_block__prompt'

def setup_inputs():

    _w = (lambda a: (lambda t: t.to(torch.bfloat16) if t.is_floating_point() else t)(torch.as_tensor(a)))
    def _A_setup():
        B, S, D = 1, 2048, 448
        ks = 4
        return {
            "q": _w((lambda *s: torch.randn(*s, dtype=torch.bfloat16) * 0.05)(B, S, D)),
            "k": _w((lambda *s: torch.randn(*s, dtype=torch.bfloat16) * 0.4)(B, S, D)),
            "v": _w((lambda *s: torch.randn(*s, dtype=torch.bfloat16) * 0.4)(B, S, D)),
            "shift_k": _w((lambda *s: torch.randn(*s, dtype=torch.bfloat16) * 0.4)(D, ks) * 0.5),
            "ssm_k": _w((lambda *s: torch.randn(*s, dtype=torch.bfloat16) * 0.4)(D, S) * (1.0 / S ** 0.5)),
            "ssm_D": _w((lambda *s: torch.randn(*s, dtype=torch.bfloat16) * 0.4)(D)),
        }
    _A_in = _A_setup()

    def _B_setup():
        B, S, D = 1, 2048, 448
        return {
            "x": _w((lambda *s: torch.randn(*s, dtype=torch.bfloat16) * 0.05)(B, S, D)),
            "wqkv": _w((lambda *s: torch.randn(*s, dtype=torch.bfloat16) * 0.05)(D, 3 * D)),
            "wo": _w((lambda *s: torch.randn(*s, dtype=torch.bfloat16) * 0.05)(D, D)),
        }
    _B_in = _B_setup()

    return {
        "A_q": _A_in["q"],
        "A_k": _A_in["k"],
        "A_v": _A_in["v"],
        "A_shift_k": _A_in["shift_k"],
        "A_ssm_k": _A_in["ssm_k"],
        "A_ssm_D": _A_in["ssm_D"],
        "B_x": _B_in["x"],
        "B_wqkv": _B_in["wqkv"],
        "B_wo": _B_in["wo"],
    }

def reference(A_q, A_k, A_v, A_shift_k, A_ssm_k, A_ssm_D, B_x, B_wqkv, B_wo):
    def _A_ref(q, k, v, shift_k, ssm_k, ssm_D):
        B, S, D = q.shape
        ks = shift_k.shape[-1]
        k_pad = _pad(k, ((0, 0), (ks - 1, 0), (0, 0)))
        k_shift = torch.zeros_like(k)
        for t in range(ks):
            k_shift = k_shift + k_pad[:, t:t + S, :] * shift_k[:, ks - 1 - t][None, None, :]
        kv = k_shift * v
        L = 2 * S
        kv_pad = _pad(kv, ((0, 0), (0, S), (0, 0)))
        kf_pad = _pad(ssm_k, ((0, 0), (0, S)))
        kv_f = (lambda x, axes=(-2,-1): torch.fft.rfft2(x.float(), dim=axes))(kv_pad[:, None, :, :], axes=(1, 2))
        kf_f = (lambda x, axes=(-2,-1): torch.fft.rfft2(x.float(), dim=axes))(kf_pad[:, None, :], axes=(1, 2))
        kf_f = (lambda x, *d: x.permute(*d))(kf_f, 1, 2, 0)
        y_f = kv_f * kf_f[None, :, :, :]
        y = (lambda x, s, axes=(-2,-1): torch.fft.irfft2(x, s=s, dim=axes).to(torch.bfloat16))(y_f, (1, L), axes=(1, 2))[:, 0, :S, :]
        y = y + kv * ssm_D[None, None, :]
        return q * y

    def _B_ref(x, wqkv, wo):
        B, S, D = x.shape
        H = 16; Dh = D // H; W = 256
        qkv = (lambda x, *d: x.permute(*d))((x @ wqkv).reshape(B, S, 3, H, Dh), 2, 0, 3, 1, 4)
        q, k, v = qkv[0], qkv[1], qkv[2]
        scores = torch.einsum("bhqd,bhkd->bhqk", q, k) * (Dh ** -0.5)
        idx = torch.arange(S)
        mask = (idx[:, None] - idx[None, :] >= 0) & (idx[:, None] - idx[None, :] < W)
        scores = torch.where(mask[None, None], scores, -1e9)
        p = _softmax(scores, axis=-1)
        o = torch.einsum("bhqk,bhkd->bhqd", p, v)
        return (lambda x, *d: x.permute(*d))(o, 0, 2, 1, 3).reshape(B, S, D) @ wo

    x = A_q
    x = x + _A_ref(_layernorm(x, axis=-1), A_k, A_v, A_shift_k, A_ssm_k, A_ssm_D)
    x = x + _B_ref(_layernorm(x, axis=-1), B_wqkv, B_wo)
    x = x + _A_ref(_layernorm(x, axis=-1), A_k, A_v, A_shift_k, A_ssm_k, A_ssm_D)
    x = x + _B_ref(_layernorm(x, axis=-1), B_wqkv, B_wo)
    return x
```

```python
TS_OFF = 48 << 20

class Kernel:
    def __init__(self, name, grid, nthreads, lds=0, vgpr=256, sgpr=96, agpr=0, ts_idx=None):
        self.name = name; self.grid = grid; self.nthreads = nthreads; self.lds = lds
        self.vgpr = vgpr; self.sgpr = sgpr; self.agpr = agpr
        self.lines = []; self.ts_idx = ts_idx; self._lab = 0
    def __call__(self, s):
        for l in s.split("\n"):
            l = l.strip()
            if l: self.lines.append("    " + l if not l.endswith(":") else l)
    def label(self, base="L"):
        self._lab += 1
        return f"{base}_{self.name}_{self._lab}"
    def srd(self, d, base, nbytes):
        self(f"s_mov_b32 s{d}, s{base}\ns_mov_b32 s{d+1}, s{base+1}\ns_mov_b32 s{d+2}, {nbytes}\ns_mov_b32 s{d+3}, 0x20000")
    def srd_off(self, d, base, off, nbytes):
        self(f"s_add_u32 s{d}, s{base}, {off}\ns_addc_u32 s{d+1}, s{base+1}, 0\ns_mov_b32 s{d+2}, {nbytes}\ns_mov_b32 s{d+3}, 0x20000")
    def ts_start(self):
        if self.ts_idx is None: return
        self("s_memrealtime s[90:91]")
    def ts_end(self):
        if self.ts_idx is None: return
        off = TS_OFF + self.ts_idx * 65536 * 4
        self(f"""s_waitcnt vmcnt(0) lgkmcnt(0)
        s_memrealtime s[94:95]
        s_load_dwordx2 s[96:97], s[0:1], 88
        s_waitcnt lgkmcnt(0)
        s_add_u32 s96, s96, {off}
        s_addc_u32 s97, s97, 0
        s_mov_b32 s98, 0x40000
        s_mov_b32 s99, 0x20000
        s_mov_b64 exec, 1
        v_mov_b32 v2, s90
        v_mov_b32 v3, s91
        v_mov_b32 v4, s94
        v_mov_b32 v5, s95
        s_lshl_b32 s92, s2, 8
        s_lshl_b32 s93, s93, 4
        s_add_u32 s92, s92, s93
        v_mov_b32 v1, s92
        buffer_store_dwordx4 v[2:5], v1, s[96:99], 0 offen""")
    def wave_id_to_s93(self):
        self("v_lshrrev_b32 v1, 6, v0\ns_nop 0\nv_readfirstlane_b32 s93, v1")
    def text(self):
        t = f".globl {self.name}\n.p2align 8\n.type {self.name},@function\n{self.name}:\n"
        t += "\n".join(self.lines) + "\n    s_endpgm\n"
        return t
    def desc(self):
        acc = (self.vgpr + 3)//4*4
        nfv = acc + self.agpr if self.agpr else self.vgpr
        sg = 102 if self.ts_idx is not None else self.sgpr
        return f""".p2align 6
.amdhsa_kernel {self.name}
  .amdhsa_next_free_vgpr {nfv}
  .amdhsa_next_free_sgpr {sg}
  .amdhsa_accum_offset {acc}
  .amdhsa_group_segment_fixed_size 0
  .amdhsa_kernarg_size 96
  .amdhsa_user_sgpr_count 2
  .amdhsa_user_sgpr_kernarg_segment_ptr 1
  .amdhsa_system_sgpr_workgroup_id_x 1
.end_amdhsa_kernel
"""

def build(launch_kernels, header=""):
    out = header
    for k in launch_kernels:
        out += f"; @launch kernel={k.name} grid=({k.grid},1,1) block=({k.nthreads},1,1) lds={k.lds}\n"
    out += '.amdgcn_target "amdgcn-amd-amdhsa--gfx950"\n.text\n'
    seen = []
    for k in launch_kernels:
        if k not in seen: seen.append(k)
    for k in seen: out += k.text()
    out += '.section .rodata,"a"\n'
    for k in seen: out += k.desc()
    return out
```

```python
from asmgen import *
from layout import *

def gen_k0(ts=None):
    k = Kernel("k0_kernel", 256, 1024, lds=16384, vgpr=64, sgpr=64, ts_idx=ts)
    k.ts_start()
    k("""s_cmp_ge_u32 s2, 256
    s_cbranch_scc1 L_k0_done
    s_load_dwordx8 s[4:11], s[0:1], 0
    s_load_dwordx2 s[12:13], s[0:1], 32
    s_load_dwordx4 s[16:19], s[0:1], 56
    s_load_dwordx2 s[20:21], s[0:1], 88
    v_lshrrev_b32 v1, 6, v0
    v_and_b32 v2, 63, v0
    v_readfirstlane_b32 s22, v1
    s_mov_b32 s23, 0x24924925
    s_mul_hi_u32 s48, s2, s23
    s_mul_i32 s49, s48, 7
    s_sub_u32 s49, s2, s49
    s_mov_b32 s93, s22
    """)
    k(f"""v_lshrrev_b32 v3, 4, v0
    v_and_b32 v4, 15, v0
    s_lshl_b32 s50, s48, 6
    v_add_u32 v5, s50, v3
    s_movk_i32 s51, 896
    v_mul_lo_u32 v5, v5, s51
    s_lshl_b32 s52, s49, 7
    v_lshl_add_u32 v6, v4, 3, s52
    v_add_u32 v5, v5, v6
    v_subrev_u32 v7, 896, v5
    v_subrev_u32 v8, 1792, v5
    v_subrev_u32 v9, 2688, v5
    v_lshlrev_b32 v6, 2, v6
    s_waitcnt lgkmcnt(0)
    """)
    k.srd(24, 4, NB); k.srd(28, 6, NB); k.srd(32, 8, NB); k.srd(36, 10, 448*8); k.srd(40, 20, WS_BYTES)
    k("""s_cmp_ge_u32 s2, 224
    s_cbranch_scc1 L_k0_roles
    buffer_load_dwordx2 v[10:11], v9, s[28:31], 0 offen
    buffer_load_dwordx2 v[12:13], v8, s[28:31], 0 offen
    buffer_load_dwordx2 v[14:15], v7, s[28:31], 0 offen
    buffer_load_dwordx2 v[16:17], v5, s[28:31], 0 offen
    buffer_load_dwordx2 v[18:19], v5, s[32:35], 0 offen
    buffer_load_dwordx2 v[20:21], v5, s[24:27], 0 offen
    buffer_load_dwordx4 v[24:27], v6, s[36:39], 0 offen
    buffer_load_dwordx4 v[28:31], v6, s[36:39], 0 offen offset:16
    L_k0_roles:
    s_cmp_ge_u32 s22, 15
    s_cbranch_scc1 L_k0_roleD
    s_cmp_ge_u32 s22, 8
    s_cbranch_scc1 L_k0_roleC
    """)
    k(f"""s_lshl_b32 s53, s2, 3
    s_add_u32 s53, s53, s22
    s_mul_i32 s54, s53, 896
    v_lshlrev_b32 v32, 4, v2
    v_mov_b32 v33, 0x40000000
    v_cmp_gt_u32 vcc, 56, v2
    v_mov_b32 v40, 0x3f803f80
    s_nop 0
    v_cndmask_b32 v32, v33, v32, vcc
    buffer_load_dwordx4 v[36:39], v32, s[24:27], s54 offen
    v_mov_b32 v34, 0
    v_mov_b32 v35, 0
    s_waitcnt vmcnt(0)
    """)
    for i in range(4):
        k(f"v_dot2_f32_bf16 v34, v{36+i}, v40, v34\nv_dot2_f32_bf16 v35, v{36+i}, v{36+i}, v35")
    for sh in ["row_shr:1", "row_shr:2", "row_shr:4", "row_shr:8"]:
        k(f"s_nop 1\nv_add_f32_dpp v34, v34, v34 {sh} row_mask:0xf bank_mask:0xf bound_ctrl:0\nv_add_f32_dpp v35, v35, v35 {sh} row_mask:0xf bank_mask:0xf bound_ctrl:0")
    k("""s_nop 1
    v_add_f32_dpp v34, v34, v34 row_bcast:15 row_mask:0xa bank_mask:0xf
    v_add_f32_dpp v35, v35, v35 row_bcast:15 row_mask:0xa bank_mask:0xf
    s_nop 1
    v_add_f32_dpp v34, v34, v34 row_bcast:31 row_mask:0xc bank_mask:0xf
    v_add_f32_dpp v35, v35, v35 row_bcast:31 row_mask:0xc bank_mask:0xf
    """)
    k(f"""v_mul_f32 v34, 0x3b124925, v34
    v_mul_f32 v35, 0x3b124925, v35
    v_fma_f32 v35, -v34, v34, v35
    v_cvt_pk_bf16_f32 v36, v35, v35
    v_lshlrev_b32 v36, 16, v36
    v_add_f32 v36, 0x3727c5ac, v36
    v_cvt_pk_bf16_f32 v36, v36, v36
    v_lshlrev_b32 v36, 16, v36
    v_sqrt_f32 v36, v36
    s_lshl_b32 s54, s53, 2
    s_add_u32 s54, s54, {ST0}
    v_cvt_pk_bf16_f32 v37, v34, v36
    v_cmp_eq_u32 vcc, 63, v2
    v_mov_b32 v32, 0
    s_nop 0
    v_cndmask_b32 v32, v33, v32, vcc
    buffer_store_dword v37, v32, s[40:43], s54 offen
    s_branch L_k0_partA
    """)
    k(f"""L_k0_roleC:
    s_mul_i32 s53, s2, 7
    s_add_u32 s53, s53, s22
    s_sub_u32 s53, s53, 8
    v_and_b32 v32, 15, v2
    v_lshrrev_b32 v33, 4, v2
    s_cmp_ge_u32 s53, 1344
    s_cbranch_scc1 L_k0_roleC_wo
    s_mov_b32 s54, 0x12492493
    s_mul_hi_u32 s55, s53, s54
    s_mul_i32 s56, s55, 14
    s_sub_u32 s56, s53, s56
    s_mov_b32 s54, 0x15555556
    s_mul_hi_u32 s57, s55, s54
    s_mul_i32 s58, s57, 12
    s_sub_u32 s58, s55, s58
    s_mov_b32 s54, 0x55555556
    s_mul_hi_u32 s59, s58, s54
    s_mul_i32 s60, s59, 3
    s_sub_u32 s60, s58, s60
    """)
    k(f"""s_and_b32 s61, s59, 1
    s_lshr_b32 s62, s59, 1
    s_lshl_b32 s63, s57, 1
    s_add_u32 s62, s62, s63
    s_cmp_eq_u32 s60, 2
    s_cselect_b32 s63, 2, s61
    s_cselect_b32 s61, s61, s60
    """)
    k(f"""s_mul_i32 s63, s63, 448
    s_mul_i32 s62, s62, 28
    s_add_u32 s63, s63, s62
    s_lshl_b32 s61, s61, 4
    v_add_u32 v32, s61, v32
    v_cmp_gt_u32 vcc, 28, v32
    v_add_u32 v32, s63, v32
    v_lshlrev_b32 v32, 1, v32
    s_lshl_b32 s56, s56, 5
    v_lshl_add_u32 v33, v33, 2, s56
    s_movk_i32 s54, 2688
    v_mul_lo_u32 v33, v33, s54
    v_add_u32 v32, v32, v33
    v_mov_b32 v33, 0x40000000
    v_cndmask_b32 v32, v33, v32, vcc
    v_mov_b32 v34, v32
    s_lshl_b32 s53, s53, 10
    s_add_u32 s53, s53, {WQF}
    """)
    k.srd(44, 16, 448*1344*2)
    k("s_branch L_k0_roleC_ld")
    k(f"""L_k0_roleC_wo:
    s_sub_u32 s53, s53, 1344
    s_lshr_b32 s55, s53, 4
    s_and_b32 s56, s53, 15
    s_lshl_b32 s55, s55, 4
    v_add_u32 v32, s55, v32
    v_lshlrev_b32 v32, 1, v32
    s_mul_i32 s56, s56, 28
    v_cmp_gt_u32 vcc, 3, v33
    v_lshl_add_u32 v33, v33, 2, s56
    s_movk_i32 s54, 896
    v_mul_lo_u32 v33, v33, s54
    v_add_u32 v32, v32, v33
    v_mov_b32 v33, 0x40000000
    v_cndmask_b32 v34, v33, v32, vcc
    s_lshl_b32 s53, s53, 10
    s_add_u32 s53, s53, {WOF}
    """)
    k.srd(44, 18, 448*448*2)
    k("""L_k0_roleC_ld:
    s_mov_b32 s55, 0
    s_mov_b32 s56, s54
    s_lshl_b32 s57, s54, 1
    s_add_u32 s58, s57, s54
    s_lshl_b32 s59, s54, 4
    s_add_u32 s60, s59, s56
    s_add_u32 s61, s59, s57
    s_add_u32 s62, s59, s58
    buffer_load_ushort v36, v32, s[44:47], s55 offen
    buffer_load_ushort v58, v32, s[44:47], s56 offen
    buffer_load_ushort v37, v32, s[44:47], s57 offen
    buffer_load_ushort v59, v32, s[44:47], s58 offen
    buffer_load_ushort v38, v34, s[44:47], s59 offen
    buffer_load_ushort v60, v34, s[44:47], s60 offen
    buffer_load_ushort v39, v34, s[44:47], s61 offen
    buffer_load_ushort v61, v34, s[44:47], s62 offen
    v_lshlrev_b32 v33, 4, v2
    s_waitcnt vmcnt(0)
    v_lshl_or_b32 v36, v58, 16, v36
    v_lshl_or_b32 v37, v59, 16, v37
    v_lshl_or_b32 v38, v60, 16, v38
    v_lshl_or_b32 v39, v61, 16, v39
    buffer_store_dwordx4 v[36:39], v33, s[40:43], s53 offen
    s_branch L_k0_partA
    """)
    k("L_k0_roleD:")
    k.srd(44, 12, NB)
    k("""s_mul_i32 s53, s2, 7168
    v_lshlrev_b32 v32, 4, v2""")
    for i in range(7):
        k(f"s_add_u32 s54, s53, {1024*i}\nbuffer_load_dwordx4 v[36:39], v32, s[44:47], s54 offen")
    k("""L_k0_partA:
    s_cmp_ge_u32 s2, 224
    s_cbranch_scc1 L_k0_end
    v_mov_b32 v40, 0x3f803f80
    s_mov_b32 s53, 0xffff0000
    s_waitcnt vmcnt(0)
    """)
    for p in range(2):
        s0, s1, s2_, s3 = 24+4*p, 25+4*p, 26+4*p, 27+4*p
        k(f"""v_and_b32 v44, 0xffff, v{s0}
        v_lshrrev_b32 v45, 16, v{s0}
        v_and_b32 v46, 0xffff, v{s1}
        v_lshrrev_b32 v47, 16, v{s1}
        v_lshlrev_b32 v48, 16, v{s2_}
        v_and_b32 v49, s53, v{s2_}
        v_lshlrev_b32 v50, 16, v{s3}
        v_and_b32 v51, s53, v{s3}""")
        for h in range(2):
            w = 44+4*h; a = 52+h; t1 = 54; t2 = 55
            k(f"""v_dot2_f32_bf16 v{t1}, v{10+p}, v{w+3}, 0
            v_dot2_f32_bf16 v{t2}, v{12+p}, v{w+2}, 0
            s_nop 2
            v_cvt_pk_bf16_f32 v{t1}, v{t1}, v{t2}
            v_dot2_f32_bf16 v{t2}, v{14+p}, v{w+1}, 0
            v_dot2_f32_bf16 v{t1}, v{t1}, v40, 0
            s_nop 2
            v_cvt_pk_bf16_f32 v{t1}, v{t1}, v{t2}
            v_dot2_f32_bf16 v{t2}, v{16+p}, v{w+0}, 0
            v_dot2_f32_bf16 v{t1}, v{t1}, v40, 0
            s_nop 2
            v_cvt_pk_bf16_f32 v{t1}, v{t1}, v{t2}
            v_dot2_f32_bf16 v{a}, v{t1}, v40, 0""")
        k(f"""v_and_b32 v54, 0xffff, v{18+p}
        v_and_b32 v55, s53, v{18+p}
        s_nop 0
        v_cvt_pk_bf16_f32 v52, v52, v53
        v_dot2_f32_bf16 v54, v52, v54, 0
        v_dot2_f32_bf16 v55, v52, v55, 0
        s_nop 2
        v_cvt_pk_bf16_f32 v{56+p}, v54, v55""")
    k(f"""v_lshlrev_b32 v44, 7, v3
    v_lshl_add_u32 v44, v4, 3, v44
    ds_write_b64 v44, v[56:57]
    ds_write_b64 v44, v[20:21] offset:8192
    s_lshr_b32 s54, s22, 3
    s_and_b32 s55, s22, 7
    s_lshr_b32 s56, s55, 1
    s_and_b32 s55, s55, 1
    s_lshl_b32 s55, s55, 2
    v_lshrrev_b32 v45, 4, v2
    v_add_u32 v45, s55, v45
    v_and_b32 v46, 15, v2
    v_lshrrev_b32 v47, 2, v46
    v_lshl_add_u32 v47, v45, 3, v47
    v_lshlrev_b32 v47, 7, v47
    v_and_b32 v48, 3, v46
    v_lshl_add_u32 v47, v48, 3, v47
    s_lshl_b32 s57, s54, 13
    s_lshl_b32 s58, s56, 5
    s_add_u32 s57, s57, s58
    v_add_u32 v47, s57, v47
    s_lshl_b32 s58, s49, 6
    s_lshl_b32 s59, s56, 4
    s_add_u32 s58, s58, s59
    v_add_u32 v46, s58, v46
    v_lshlrev_b32 v46, 12, v46
    v_lshl_add_u32 v46, v45, 4, v46
    s_lshl_b32 s58, s48, 7
    s_mul_i32 s59, s54, {X0T-KVT}
    s_add_u32 s58, s58, s59
    s_add_u32 s58, s58, {KVT}
    s_waitcnt lgkmcnt(0)
    s_barrier
    ds_read_b64_tr_b16 v[52:53], v47
    ds_read_b64_tr_b16 v[54:55], v47 offset:512
    s_waitcnt lgkmcnt(0)
    buffer_store_dwordx4 v[52:55], v46, s[40:43], s58 offen
    L_k0_end:
    """)
    k.ts_end()
    k("L_k0_done:")
    return k
```

```python
from asmgen import *
from layout import *
CS = 4160; GOFF = 4608; CHS = GOFF + 8*CS

def gen_k1(ts=None):
    k = Kernel("k1_kernel", 224, 256, lds=2*CHS, vgpr=200, sgpr=64, ts_idx=ts)
    k.ts_start()
    k(f"""s_cmp_ge_u32 s2, 224
    s_cbranch_scc1 L_k1_done
    s_load_dwordx4 s[4:7], s[0:1], 32
    s_load_dwordx2 s[8:9], s[0:1], 88
    v_lshrrev_b32 v1, 6, v0
    v_and_b32 v2, 63, v0
    v_readfirstlane_b32 s22, v1
    s_lshl_b32 s10, s2, 2
    s_lshl_b32 s11, s2, 13
    v_lshlrev_b32 v3, 4, v0
    v_sub_u32 v3, 4064, v3
    v_add_u32 v3, s11, v3
    v_add_u32 v27, 16, v3
    v_lshlrev_b32 v4, 4, v2
    s_mov_b32 s93, s22
    s_lshr_b32 s23, s22, 1
    s_and_b32 s33, s22, 1
    s_waitcnt lgkmcnt(0)
    s_load_dword s34, s[6:7], s10
    """)
    k.srd(24, 4, NB); k.srd(28, 8, WS_BYTES)
    k(f"""buffer_load_dwordx4 v[168:171], v3, s[24:27], 0 offen
    buffer_load_dwordx4 v[172:175], v27, s[24:27], 0 offen
    s_movk_i32 s35, 4096
    buffer_load_dwordx4 v[176:179], v3, s[24:27], s35 offen
    buffer_load_dwordx4 v[180:183], v27, s[24:27], s35 offen
    s_mul_i32 s36, s23, {CHS}
    s_lshl_b32 s37, s33, 11
    s_add_u32 s38, s36, s37
    s_add_u32 s38, s38, 512
    s_mov_b32 m0, s38
    s_lshl_b32 s39, s23, 12
    s_add_u32 s39, s39, s11
    s_add_u32 s44, s39, s37
    s_add_u32 s44, s44, {KVT}
    buffer_load_dwordx4 v4, s[28:31], s44 offen lds
    buffer_load_dwordx4 v4, s[28:31], s44 offen offset:1024 lds
    """)
    k("""s_cmp_eq_u32 s33, 0
    s_cselect_b32 s40, 7, 6
    s_cselect_b32 s41, 4, 5
    s_cselect_b32 s42, 3, 2
    s_cselect_b32 s43, 0, 1
    s_cselect_b32 s48, 2, 4
    s_cselect_b32 s49, 6, 2
    s_cselect_b32 s50, 2, 6
    s_cselect_b32 s51, 6, 2
    s_lshl_b32 s40, s40, 9
    s_lshl_b32 s41, s41, 9
    s_lshl_b32 s42, s42, 9
    s_lshl_b32 s43, s43, 9
    v_and_b32 v5, 15, v2
    v_lshrrev_b32 v6, 4, v2
    v_lshlrev_b32 v7, 5, v5
    v_lshl_add_u32 v7, v6, 3, v7
    v_lshlrev_b32 v8, 1, v7
    """)
    for sl in range(4):
        k(f"""s_add_u32 s45, s39, s{40+sl}
        s_add_u32 s45, s45, {X0T}
        buffer_load_dwordx2 v[{144+2*sl}:{145+2*sl}], v7, s[28:31], s45 offen
        s_lshl_b32 s45, s{40+sl}, 1
        s_add_u32 s45, s45, {ST0}
        buffer_load_dwordx4 v[{152+4*sl}:{155+4*sl}], v8, s[28:31], s45 offen""")
    k(f"""v_mov_b32 v184, 0
    v_mov_b32 v185, 0
    v_mov_b32 v186, 0
    v_mov_b32 v187, 0
    s_mov_b32 s45, {CHS}
    v_bfe_u32 v9, v0, 5, 1
    v_mul_lo_u32 v9, v9, s45
    v_and_b32 v10, 31, v0
    v_lshl_add_u32 v9, v10, 4, v9
    ds_write_b128 v9, v[184:187]
    v_bfe_u32 v9, v0, 3, 1
    v_mul_lo_u32 v9, v9, s45
    v_and_b32 v10, 7, v0
    s_movk_i32 s45, {CS}
    v_mul_lo_u32 v10, v10, s45
    v_add_u32 v9, v9, v10
    ds_write_b128 v9, v[184:187] offset:{GOFF+258*16}
    v_lshlrev_b32 v9, 4, v0
    v_cmp_eq_u32 vcc, 255, v0
    v_mov_b32 v11, 0xffff
    """)
    k(f"""v_and_b32 v10, 7, v5
    v_sub_u32 v10, 7, v10
    v_mul_lo_u32 v10, v10, s45
    v_lshrrev_b32 v12, 3, v5
    v_sub_u32 v12, v6, v12
    v_lshl_add_u32 v10, v12, 4, v10
    s_add_u32 s45, s36, {GOFF+4080-384}
    v_add_u32 v10, s45, v10
    v_lshlrev_b32 v12, 5, v5
    v_lshl_add_u32 v12, v6, 4, v12
    s_add_u32 s45, s36, {480-384}
    v_add_u32 v12, s45, v12
    v_add_u32 v13, s41, v12
    v_add_u32 v14, s42, v12
    v_add_u32 v15, s43, v12
    v_add_u32 v12, s40, v12
    """)
    for r in range(48, 64): k(f"v_mov_b32 v{r}, 0")
    k("s_waitcnt vmcnt(10)")
    for ch in range(2):
        X = 168 + 8*ch
        for w in range(4): k(f"v_cndmask_b32 v{X+w}, v{X+w}, v184, vcc")
        for c in range(8):
            o = 188 + 4*(c & 1)
            for q in range(4):
                e1 = 15 - c - 2*q
                if e1 & 1: k(f"v_alignbit_b32 v{o+q}, v{X+(e1-1)//2}, v{X+(e1-1)//2}, 16")
                else: k(f"v_bfi_b32 v{o+q}, v11, v{X+e1//2}, v{X+e1//2-1}")
            off = ch*CHS + GOFF + c*CS + 32
            if off < 65536: k(f"ds_write_b128 v9, v[{o}:{o+3}] offset:{off}")
            else:
                k(f"v_add_u32 v16, {off}, v9\nds_write_b128 v16, v[{o}:{o+3}]")
    k("s_waitcnt vmcnt(8) lgkmcnt(0)\ns_barrier")
    def rd(st, T, off):
        b = 64 + 20*st
        k(f"ds_read_b128 v[{b}:{b+3}], v10 offset:{off}")
        for t in range(T): k(f"ds_read_b128 v[{b+4+4*t}:{b+7+4*t}], v{12+t} offset:{off}")
    for c in range(3): rd(c, 4, 384-64*c)
    for T in (4, 3, 2, 1):
        cnt = 48 + (4 - T)
        k(f"L_k1_loop{T}:")
        for kk in range(4):
            rd((kk+3) & 3, T, 64*(3-kk))
            k(f"s_waitcnt lgkmcnt({3*(T+1)})")
            b = 64 + 20*kk
            for t in range(T):
                k(f"v_mfma_f32_16x16x32_bf16 v[{48+4*t}:{51+4*t}], v[{b}:{b+3}], v[{b+4+4*t}:{b+7+4*t}], v[{48+4*t}:{51+4*t}]")
        k("v_subrev_u32 v10, 256, v10")
        for t in range(T): k(f"v_subrev_u32 v{12+t}, 256, v{12+t}")
        k(f"""s_sub_u32 s{cnt}, s{cnt}, 1
        s_cmp_lg_u32 s{cnt}, 0
        s_cbranch_scc1 L_k1_loop{T}""")
    k(f"""s_add_u32 s45, s36, 512
    v_add_u32 v16, s45, v7
    v_add_u32 v17, s40, v16
    v_add_u32 v18, s41, v16
    v_add_u32 v19, s42, v16
    v_add_u32 v20, s43, v16
    s_waitcnt lgkmcnt(0)
    ds_read_b64 v[64:65], v17
    ds_read_b64 v[66:67], v18
    ds_read_b64 v[68:69], v19
    ds_read_b64 v[70:71], v20
    s_lshl_b32 s45, s23, 4
    s_lshr_b32 s45, s34, s45
    s_and_b32 s46, s45, 0xffff
    s_lshl_b32 s47, s45, 16
    v_mov_b32 v21, s46
    v_mov_b32 v22, s47
    v_mov_b32 v23, 0x3f803f80
    v_mov_b32 v24, 0xbf803f80
    v_mov_b32 v25, 0x3f80
    v_mov_b32 v26, 0x3f800000
    s_mov_b32 s46, 0xffff0000
    s_mov_b32 s47, 0x01000504
    s_mov_b32 s52, 0x01000706
    s_waitcnt vmcnt(0) lgkmcnt(0)
    """)
    for sl in range(4):
        for pr in range(2):
            a0, a1 = 48+4*sl+2*pr, 49+4*sl+2*pr
            kvp = 64+2*sl+pr; xp = 144+2*sl+pr; st0, st1 = 152+4*sl+2*pr, 153+4*sl+2*pr
            yo = 72+pr; xo = 74+pr
            k(f"""v_dot2_f32_bf16 v30, v{kvp}, v21, 0
            v_dot2_f32_bf16 v31, v{kvp}, v22, 0
            v_perm_b32 v32, v{xp}, v{st0}, s47
            v_perm_b32 v33, v{xp}, v{st1}, s52
            v_and_b32 v34, s46, v{st0}
            v_and_b32 v35, s46, v{st1}
            v_cvt_pk_bf16_f32 v30, v{a0}, v30
            v_cvt_pk_bf16_f32 v31, v{a1}, v31
            v_dot2_f32_bf16 v32, v32, v24, 0
            v_dot2_f32_bf16 v33, v33, v24, 0
            v_dot2_f32_bf16 v30, v30, v23, 0
            v_dot2_f32_bf16 v31, v31, v23, 0
            v_rcp_f32 v34, v34
            v_rcp_f32 v35, v35
            v_cvt_pk_bf16_f32 v32, v32, v33
            v_cvt_pk_bf16_f32 v{yo}, v30, v31
            v_lshlrev_b32 v33, 16, v32
            v_and_b32 v32, s46, v32
            v_mul_f32 v33, v33, v34
            v_mul_f32 v32, v32, v35
            v_and_b32 v30, 0xffff, v{yo}
            v_and_b32 v31, s46, v{yo}
            v_cvt_pk_bf16_f32 v32, v33, v32
            v_lshlrev_b32 v34, 16, v{xp}
            v_and_b32 v35, s46, v{xp}
            v_dot2_f32_bf16 v30, v32, v30, 0
            v_dot2_f32_bf16 v31, v32, v31, 0
            s_nop 2
            v_cvt_pk_bf16_f32 v30, v30, v31
            v_dot2_f32_bf16 v34, v30, v25, v34
            v_dot2_f32_bf16 v35, v30, v26, v35
            s_nop 2
            v_cvt_pk_bf16_f32 v{xo}, v34, v35""")
        k(f"""s_add_u32 s45, s39, s{40+sl}
        s_add_u32 s53, s45, {YT}
        s_add_u32 s45, s45, {X1T}
        buffer_store_dwordx2 v[72:73], v7, s[28:31], s53 offen
        buffer_store_dwordx2 v[74:75], v7, s[28:31], s45 offen""")
    k.ts_end()
    k("L_k1_done:")
    return k
```

```python
from asmgen import *
from layout import *
XT_OFF = 0; YT_OFF = 57344; HF_OFF = 65536

def xreduce(k, regs, tmp):
    for op in ("v_permlane16_swap_b32", "v_permlane32_swap_b32"):
        for r, t in zip(regs, tmp): k(f"v_mov_b32 v{t}, v{r}")
        k("s_nop 1")
        for r, t in zip(regs, tmp): k(f"{op} v{r}, v{t}")
        k("s_nop 1")
        for r, t in zip(regs, tmp): k(f"v_add_f32 v{r}, v{r}, v{t}")

def ln_stats(k, s1, s2, m, r, t):
    k(f"""v_mul_f32 v{s1}, 0x3b124925, v{s1}
    v_mul_f32 v{s2}, 0x3b124925, v{s2}
    v_fma_f32 v{s2}, -v{s1}, v{s1}, v{s2}
    v_cvt_pk_bf16_f32 v{t}, v{s1}, v{s2}
    v_lshlrev_b32 v{m}, 16, v{t}
    v_and_b32 v{t}, 0xffff0000, v{t}
    v_add_f32 v{t}, 0x3727c5ac, v{t}
    v_cvt_pk_bf16_f32 v{t}, v{t}, v{t}
    v_lshlrev_b32 v{t}, 16, v{t}
    v_sqrt_f32 v{t}, v{t}
    s_nop 0
    v_cvt_pk_bf16_f32 v{t}, v{t}, v{t}
    v_lshlrev_b32 v{t}, 16, v{t}
    v_rcp_f32 v{r}, v{t}
    s_nop 0""")

def gemm_and_store(k, name, nvm_after):
    ACC = 8
    AF = 56
    k(f"v_lshlrev_b32 v3, 4, v2\nv_add_u32 v4, {HF_OFF}, v3")
    for r in range(ACC, ACC+48): k(f"v_mov_b32 v{r}, 0")
    k("s_waitcnt lgkmcnt(0)\ns_barrier")
    def rd(s):
        for mu in range(4):
            b = AF + 16*(s & 1) + 4*mu
            k(f"ds_read_b128 v[{b}:{b+3}], v4 offset:{(mu*14+s)*1024}")
    rd(0)
    for s in range(14):
        if s < 13: rd(s+1)
        k(f"s_waitcnt vmcnt({min(63, 3*(13-s)+nvm_after)}) lgkmcnt({4 if s < 13 else 0})")
        for mu in range(4):
            b = AF + 16*(s & 1) + 4*mu
            for j in range(3):
                a = (s*3+j)*4; c = ACC + (mu*3+j)*4
                if j < 2: k(f"v_mfma_f32_16x16x32_bf16 v[{c}:{c+3}], a[{a}:{a+3}], v[{b}:{b+3}], v[{c}:{c+3}]")
                else: k(f"v_mfma_f32_16x16x32_bf16 v[{c}:{c+3}], v[{b}:{b+3}], a[{a}:{a+3}], v[{c}:{c+3}]")
    k(f"""s_lshr_b32 s40, s22, 1
    s_lshl_b32 s41, s25, 1
    s_add_u32 s40, s40, s41
    s_and_b32 s41, s22, 1
    s_lshl_b32 s42, s40, 17
    s_lshl_b32 s43, s24, 12
    s_add_u32 s42, s42, s43
    s_mul_i32 s44, s41, {KF-QF}
    s_add_u32 s44, s44, s42
    s_add_u32 s44, s44, {QF}
    s_lshl_b32 s45, s41, 10
    s_add_u32 s45, s45, s42
    s_add_u32 s45, s45, {VF}
    s_nop 4
    """)
    for mu in range(4):
        c0 = ACC + (mu*3)*4; c1 = c0 + 4; o = 56 + 4*mu
        k(f"""v_cvt_pk_bf16_f32 v{o}, v{c0}, v{c0+1}
        v_cvt_pk_bf16_f32 v{o+1}, v{c0+2}, v{c0+3}
        v_cvt_pk_bf16_f32 v{o+2}, v{c1}, v{c1+1}
        v_cvt_pk_bf16_f32 v{o+3}, v{c1+2}, v{c1+3}
        buffer_store_dwordx4 v[{o}:{o+3}], v3, s[28:31], s44 offen offset:{1024*mu}""")
    for j2 in range(2):
        c0 = ACC + ((2*j2)*3+2)*4; c1 = ACC + ((2*j2+1)*3+2)*4; o = 72 + 4*j2
        k(f"""v_cvt_pk_bf16_f32 v{o}, v{c0}, v{c0+1}
        v_cvt_pk_bf16_f32 v{o+1}, v{c0+2}, v{c0+3}
        v_cvt_pk_bf16_f32 v{o+2}, v{c1}, v{c1+1}
        v_cvt_pk_bf16_f32 v{o+3}, v{c1+2}, v{c1+3}
        buffer_store_dwordx4 v[{o}:{o+3}], v3, s[28:31], s45 offen offset:{2048*j2}""")

def wloads(k):
    k(f"""s_mul_i32 s40, s25, {12*14*1024}
    s_mul_i32 s41, s22, {3*14*1024}
    s_add_u32 s40, s40, s41
    s_add_u32 s40, s40, {WQF}
    s_add_u32 s41, s40, {14*1024}
    s_add_u32 s42, s40, {28*1024}""")
    for s in range(14):
        if s and s % 4 == 0:
            k("s_add_u32 s40, s40, 4096\ns_add_u32 s41, s41, 4096\ns_add_u32 s42, s42, 4096")
        for j in range(3):
            a = (s*3+j)*4
            k(f"buffer_load_dwordx4 a[{a}:{a+3}], v3, s[28:31], s{40+j} offen offset:{1024*(s%4)}")

def gen_k2(ts=None):
    k = Kernel("k2_kernel", 256, 256, lds=HF_OFF+57344, vgpr=160, sgpr=64, agpr=168, ts_idx=ts)
    k.ts_start()
    k(f"""s_cmp_ge_u32 s2, 256
    s_cbranch_scc1 L_k2_done
    s_load_dwordx2 s[8:9], s[0:1], 88
    v_lshrrev_b32 v1, 6, v0
    v_and_b32 v2, 63, v0
    v_readfirstlane_b32 s22, v1
    s_lshr_b32 s24, s2, 3
    s_and_b32 s25, s2, 7
    v_lshlrev_b32 v3, 4, v2
    v_lshrrev_b32 v4, 3, v2
    v_and_b32 v5, 7, v2
    v_and_b32 v6, 6, v4
    v_xor_b32 v5, v5, v6
    v_lshlrev_b32 v4, 12, v4
    v_lshl_add_u32 v4, v5, 4, v4
    s_mov_b32 s93, s22
    s_lshl_b32 s26, s24, 7
    s_mul_i32 s27, s22, {14*32768}
    s_add_u32 s27, s27, s26
    s_add_u32 s27, s27, {X1T}
    s_mul_i32 s32, s22, {14*1024}
    s_waitcnt lgkmcnt(0)
    """)
    k.srd(28, 8, WS_BYTES)
    for q in range(14):
        k(f"""s_mov_b32 m0, s32
        s_add_u32 s32, s32, 1024
        buffer_load_dwordx4 v4, s[28:31], s27 offen lds
        s_add_u32 s27, s27, 32768""")
    k(f"""s_lshl_b32 s33, s25, 17
    s_lshl_b32 s34, s22, 15
    s_add_u32 s33, s33, s34
    s_add_u32 s33, s33, s26
    s_add_u32 s33, s33, {YT}
    s_lshl_b32 s34, s22, 10
    s_add_u32 s34, s34, {YT_OFF}
    s_mov_b32 m0, s34
    s_add_u32 s34, s34, 4096
    buffer_load_dwordx4 v4, s[28:31], s33 offen lds
    s_add_u32 s33, s33, {8<<17}
    s_mov_b32 m0, s34
    s_nop 0
    buffer_load_dwordx4 v4, s[28:31], s33 offen lds
    """)
    wloads(k)
    k(f"""v_lshrrev_b32 v5, 4, v2
    v_bfe_u32 v6, v2, 2, 2
    v_lshl_add_u32 v5, v5, 2, v6
    v_lshrrev_b32 v6, 1, v5
    v_and_b32 v6, 3, v6
    v_xor_b32 v6, s22, v6
    v_lshlrev_b32 v5, 7, v5
    v_lshl_add_u32 v5, v6, 5, v5
    v_and_b32 v6, 3, v2
    v_lshl_add_u32 v5, v6, 3, v5
    v_mov_b32 v150, 0x3f803f80
    v_mov_b32 v151, 0x3f80
    v_mov_b32 v152, 0x3f800000
    v_mov_b32 v144, 0
    v_mov_b32 v145, 0
    v_mov_b32 v146, 0
    v_mov_b32 v147, 0
    s_mov_b32 s35, 0xffff0000
    s_waitcnt vmcnt(42)
    s_barrier
    """)
    X = 88
    for s in range(14):
        k(f"ds_read_b64_tr_b16 v[{X+4*s}:{X+4*s+1}], v5 offset:{4096*s}\nds_read_b64_tr_b16 v[{X+4*s+2}:{X+4*s+3}], v5 offset:{4096*s+2048}")
    k(f"""s_lshl_b32 s36, s25, 12
    v_add_u32 v6, s36, v5
    ds_read_b64_tr_b16 v[8:9], v6
    ds_read_b64_tr_b16 v[10:11], v6 offset:2048
    ds_read_b64_tr_b16 v[12:13], v6 offset:32768
    ds_read_b64_tr_b16 v[14:15], v6 offset:{32768+2048}
    ds_read_b64_tr_b16 v[16:17], v5 offset:{YT_OFF}
    ds_read_b64_tr_b16 v[18:19], v5 offset:{YT_OFF+2048}
    ds_read_b64_tr_b16 v[20:21], v5 offset:{YT_OFF+4096}
    ds_read_b64_tr_b16 v[22:23], v5 offset:{YT_OFF+6144}
    """)
    for s in range(14):
        n = 2*(13-s) + 8
        if n <= 15: k(f"s_waitcnt lgkmcnt({n})")
        elif s == 0: k("s_waitcnt lgkmcnt(15)")
        for i in range(4):
            r = X+4*s+i
            k(f"v_dot2_f32_bf16 v{144+(i&1)}, v{r}, v150, v{144+(i&1)}\nv_dot2_f32_bf16 v{146+(i&1)}, v{r}, v{r}, v{146+(i&1)}")
    k(f"""s_lshl_b32 s36, s24, 2
    s_add_u32 s36, s36, s22
    s_mul_i32 s36, s36, {14*1024}
    s_lshl_b32 s37, s25, 10
    s_add_u32 s36, s36, s37
    s_add_u32 s37, s36, {X1F}
    s_add_u32 s38, s36, {YF}
    s_waitcnt lgkmcnt(0)
    buffer_store_dwordx4 v[8:11], v3, s[28:31], s37 offen
    buffer_store_dwordx4 v[16:19], v3, s[28:31], s38 offen
    s_cmp_ge_u32 s25, 6
    s_cbranch_scc1 L_k2_skip2
    s_add_u32 s37, s37, 8192
    s_add_u32 s38, s38, 8192
    buffer_store_dwordx4 v[12:15], v3, s[28:31], s37 offen
    buffer_store_dwordx4 v[20:23], v3, s[28:31], s38 offen
    L_k2_skip2:
    v_add_f32 v144, v144, v145
    v_add_f32 v146, v146, v147
    """)
    xreduce(k, [144, 146], [145, 147])
    ln_stats(k, 144, 146, 148, 149, 145)
    k(f"""v_sub_f32 v148, 0, v148
    s_mul_i32 s36, s22, {14*1024}
    s_add_u32 s36, s36, {HF_OFF}
    v_add_u32 v6, s36, v3""")
    for s in range(14):
        t = 24 + 8*(s & 1)
        for i in range(4):
            k(f"v_dot2_f32_bf16 v{t+2*i}, v{X+4*s+i}, v151, v148\nv_dot2_f32_bf16 v{t+2*i+1}, v{X+4*s+i}, v152, v148")
        k("s_nop 1")
        for i in range(4): k(f"v_cvt_pk_bf16_f32 v{X+4*s+i}, v{t+2*i}, v{t+2*i+1}")
        for i in range(4): k(f"v_lshlrev_b32 v{t+2*i}, 16, v{X+4*s+i}\nv_and_b32 v{t+2*i+1}, s35, v{X+4*s+i}")
        for i in range(8): k(f"v_mul_f32 v{t+i}, v{t+i}, v149")
        for i in range(4): k(f"v_cvt_pk_bf16_f32 v{X+4*s+i}, v{t+2*i}, v{t+2*i+1}")
        k(f"ds_write_b128 v6, v[{X+4*s}:{X+4*s+3}] offset:{1024*s}")
    gemm_and_store(k, "k2", 2)
    k.ts_end()
    k("L_k2_done:")
    return k
```

```python
from asmgen import *
from layout import *
VOFF = 24576
def gen_k3(ts=None, name="k3_kernel"):
    k = Kernel(name, 256, 512, lds=49152, vgpr=200, sgpr=72, ts_idx=ts)
    L = name[:2]
    k.ts_start()
    k(f"""s_cmp_ge_u32 s2, 256
    s_cbranch_scc1 L_{L}_done
    s_load_dwordx2 s[8:9], s[0:1], 88
    v_lshrrev_b32 v1, 6, v0
    v_and_b32 v2, 63, v0
    v_readfirstlane_b32 s22, v1
    s_and_b32 s24, s2, 15
    s_lshr_b32 s25, s2, 4
    v_lshlrev_b32 v3, 4, v2
    s_mov_b32 s93, s22
    s_lshl_b32 s26, s24, 17
    s_lshl_b32 s27, s25, 13
    s_add_u32 s26, s26, s27
    s_mul_i32 s27, s22, 3072
    s_add_u32 s32, s26, s27
    s_add_u32 s33, s32, {VF-16384}
    s_add_u32 s32, s32, {KF-16384}
    s_lshl_b32 s34, s22, 10
    s_add_u32 s34, s34, s26
    s_add_u32 s34, s34, {QF}
    s_add_u32 s35, s27, {VOFF}
    s_waitcnt lgkmcnt(0)
    """)
    k.srd(28, 8, WS_BYTES)
    k("""s_mov_b32 m0, s27
    buffer_load_dwordx4 v[4:7], v3, s[28:31], s34 offen
    buffer_load_dwordx4 v3, s[28:31], s32 offen lds
    buffer_load_dwordx4 v3, s[28:31], s32 offen offset:1024 lds
    buffer_load_dwordx4 v3, s[28:31], s32 offen offset:2048 lds
    s_mov_b32 m0, s35
    s_nop 0
    buffer_load_dwordx4 v3, s[28:31], s33 offen lds
    buffer_load_dwordx4 v3, s[28:31], s33 offen offset:1024 lds
    buffer_load_dwordx4 v3, s[28:31], s33 offen offset:2048 lds
    """)
    k(f"""s_lshr_b32 s36, s22, 1
    s_lshl_b32 s37, s36, 11
    v_add_u32 v8, s37, v3
    s_lshl_b32 s38, s25, 7
    s_lshl_b32 s39, s36, 5
    s_add_u32 s39, s39, s38
    s_sub_u32 s39, s39, 256
    s_lshl_b32 s40, s22, 4
    s_add_u32 s40, s40, s38
    v_and_b32 v9, 15, v2
    v_add_u32 v9, s40, v9
    v_lshrrev_b32 v10, 4, v2
    v_lshlrev_b32 v10, 2, v10
    v_add_u32 v10, s39, v10
    v_subrev_u32 v11, 255, v9
    v_max_i32 v11, 0, v11
    v_sub_u32 v11, v11, v10
    v_sub_u32 v9, v9, v10
    v_mov_b32 v12, 0xb9f73e42
    v_mov_b32 v13, 0xbb2c3fb9
    v_mov_b32 v14, 0xce6e6b28
    s_waitcnt vmcnt(0)
    s_barrier
    """)
    KR = 96; SR = 24
    for u in range(18): k(f"ds_read_b128 v[{KR+4*u}:{KR+4*u+3}], v8 offset:{1024*u}")
    for u in range(18):
        n = 17 - u
        if n <= 15: k(f"s_waitcnt lgkmcnt({n})")
        elif u == 0: k("s_waitcnt lgkmcnt(15)")
        k(f"v_mfma_f32_16x16x32_bf16 v[{SR+4*u}:{SR+4*u+3}], v[{KR+4*u}:{KR+4*u+3}], v[4:7], 0")
    for j in range(18): k(f"ds_read_b128 v[{KR+4*j}:{KR+4*j+3}], v8 offset:{VOFF+1024*j}")
    for idx, u in enumerate((0, 1)):
        for r in range(4): k(f"v_cmp_ge_i32 s[{44+2*(4*idx+r)}:{45+2*(4*idx+r)}], {16*u+r}, v11")
    k("v_mov_b32 v15, 0xff800000")
    for i in range(72):
        a = SR+i
        k(f"v_cvt_pk_bf16_f32 v{a}, v{a}, v{a}")
        if i >= 1: k(f"v_dot2_f32_bf16 v{a-1}, v{a-1}, v12, 0")
    k(f"v_dot2_f32_bf16 v{SR+71}, v{SR+71}, v12, 0")
    k("s_nop 2")
    for idx, u in enumerate((0, 1)):
        for r in range(4): k(f"v_cndmask_b32 v{SR+4*u+r}, v14, v{SR+4*u+r}, s[{44+2*(4*idx+r)}:{45+2*(4*idx+r)}]")
    k("v_subrev_u32 v9, 256, v9")
    for idx, u in enumerate((16, 17)):
        for r in range(4): k(f"v_cmp_le_i32 s[{44+2*(4*idx+r)}:{45+2*(4*idx+r)}], {16*(u-16)+r}, v9")
    k("s_nop 1")
    for idx, u in enumerate((16, 17)):
        for r in range(4): k(f"v_cndmask_b32 v{SR+4*u+r}, v14, v{SR+4*u+r}, s[{44+2*(4*idx+r)}:{45+2*(4*idx+r)}]")
    k(f"s_cmp_ge_i32 s39, -32\ns_cbranch_scc1 L_{L}_noneg")
    for u in range(2, 16, 2):
        k(f"s_cmp_ge_i32 s39, {-16*u}\ns_cbranch_scc1 L_{L}_noneg")
        for r in range(8): k(f"v_mov_b32 v{SR+4*u+r}, v14")
    k(f"L_{L}_noneg:")
    k(f"v_max3_f32 v15, v{SR}, v{SR+1}, v15\nv_max3_f32 v16, v{SR+2}, v{SR+3}, v14")
    for i in range(4, 72, 4):
        k(f"v_max3_f32 v15, v{SR+i}, v{SR+i+1}, v15\nv_max3_f32 v16, v{SR+i+2}, v{SR+i+3}, v16")
    k("v_max_f32 v15, v15, v16")
    for op in ("v_permlane16_swap_b32", "v_permlane32_swap_b32"):
        k(f"v_mov_b32 v16, v15\ns_nop 1\n{op} v15, v16\ns_nop 1\nv_max_f32 v15, v15, v16")
    k("""v_cvt_pk_bf16_f32 v15, v15, v15
    v_mov_b32 v17, 0
    v_mov_b32 v18, 0
    v_dot2_f32_bf16 v15, v15, v13, 0
    s_nop 2
    v_sub_f32 v15, 0, v15""")
    for i in range(0, 72, 2):
        a = SR+i; t = 168+(i//2)%8
        k(f"""v_cvt_pk_bf16_f32 v{a}, v{a}, v{a}
        v_cvt_pk_bf16_f32 v{a+1}, v{a+1}, v{a+1}
        v_dot2_f32_bf16 v{a}, v{a}, v13, v15
        v_dot2_f32_bf16 v{a+1}, v{a+1}, v13, v15""")
        if i >= 2:
            k(f"v_exp_f32 v{a-2}, v{a-2}\nv_exp_f32 v{a-1}, v{a-1}")
        if i >= 4:
            k(f"v_add_f32 v17, v17, v{a-4}\nv_add_f32 v18, v18, v{a-3}")
    a = SR+72
    k(f"""s_nop 1
    v_exp_f32 v{a-2}, v{a-2}
    v_exp_f32 v{a-1}, v{a-1}
    v_add_f32 v17, v17, v{a-4}
    v_add_f32 v18, v18, v{a-3}
    v_add_f32 v17, v17, v{a-2}
    v_add_f32 v18, v18, v{a-1}
    v_add_f32 v17, v17, v18""")
    for op in ("v_permlane16_swap_b32", "v_permlane32_swap_b32"):
        k(f"v_mov_b32 v16, v17\ns_nop 1\n{op} v17, v16\ns_nop 1\nv_add_f32 v17, v17, v16")
    k("v_rcp_f32 v17, v17\ns_waitcnt lgkmcnt(0)")
    for j in range(9):
        b = SR+8*j; p = 168+4*(j & 1)
        for i in range(8): k(f"v_mul_f32 v{b+i}, v{b+i}, v17")
        for i in range(4): k(f"v_cvt_pk_bf16_f32 v{p+i}, v{b+2*i}, v{b+2*i+1}")
        k("s_nop 1")
        for tau in range(2):
            c = "0" if j == 0 else f"v[{176+4*tau}:{179+4*tau}]"
            k(f"v_mfma_f32_16x16x32_bf16 v[{176+4*tau}:{179+4*tau}], v[{KR+4*(2*j+tau)}:{KR+4*(2*j+tau)+3}], v[{p}:{p+3}], {c}")
    k(f"""s_lshl_b32 s36, s25, 3
    s_add_u32 s36, s36, s22
    s_lshl_b32 s36, s36, 4
    s_add_u32 s36, s36, s24
    s_lshl_b32 s36, s36, 10
    s_add_u32 s36, s36, {OF}
    s_nop 4
    v_cvt_pk_bf16_f32 v184, v176, v177
    v_cvt_pk_bf16_f32 v185, v178, v179
    v_cvt_pk_bf16_f32 v186, v180, v181
    v_cvt_pk_bf16_f32 v187, v182, v183
    buffer_store_dwordx4 v[184:187], v3, s[28:31], s36 offen
    """)
    k.ts_end()
    k(f"L_{L}_done:")
    return k
```

```python
from asmgen import *
from layout import *
BOFF = 65536; POFF = 131072
def gen_k4(final, ts=None):
    name = "k7_kernel" if final else "k4_kernel"; L = name[:2]
    k = Kernel(name, 224, 256, lds=POFF+(0 if final else 16384), vgpr=128, sgpr=64, ts_idx=ts)
    k.ts_start()
    k(f"""s_cmp_ge_u32 s2, 224
    s_cbranch_scc1 L_{L}_done
    s_load_dwordx2 s[8:9], s[0:1], 88
    s_load_dwordx2 s[10:11], s[0:1], 72
    v_lshrrev_b32 v1, 6, v0
    v_and_b32 v2, 63, v0
    v_readfirstlane_b32 s22, v1
    s_mov_b32 s23, 0x24924925
    s_mul_hi_u32 s24, s2, s23
    s_mul_i32 s25, s24, 7
    s_sub_u32 s25, s2, s25
    v_lshlrev_b32 v3, 4, v2
    s_mov_b32 s93, s22
    s_lshl_b32 s26, s22, 14
    s_lshl_b32 s27, s24, 16
    s_add_u32 s27, s27, s26
    s_add_u32 s27, s27, {OF}
    s_lshl_b32 s32, s25, 16
    s_add_u32 s32, s32, s26
    s_add_u32 s32, s32, {WOF}
    s_add_u32 s33, s26, {BOFF}
    s_lshr_b32 s34, s22, 1
    s_and_b32 s35, s22, 1
    s_waitcnt lgkmcnt(0)
    """)
    k.srd(28, 8, WS_BYTES)
    for grp in range(4):
        k(f"s_mov_b32 m0, s26\ns_add_u32 s26, s26, 4096")
        for i in range(4): k(f"buffer_load_dwordx4 v3, s[28:31], s27 offen offset:{1024*i} lds")
        k(f"s_add_u32 s27, s27, 4096\ns_mov_b32 m0, s33\ns_add_u32 s33, s33, 4096")
        for i in range(4): k(f"buffer_load_dwordx4 v3, s[28:31], s32 offen offset:{1024*i} lds")
        k(f"s_add_u32 s32, s32, 4096")
    k(f"""s_lshl_b32 s36, s24, 2
    s_lshl_b32 s37, s34, 1
    s_add_u32 s36, s36, s37
    s_mul_i32 s38, s36, 14
    s_lshl_b32 s39, s25, 1
    s_add_u32 s39, s39, s35
    s_add_u32 s38, s38, s39
    s_lshl_b32 s38, s38, 10
    s_add_u32 s40, s38, {X3F if final else X1F}
    s_add_u32 s41, s40, {14*1024}
    buffer_load_dwordx4 v[64:67], v3, s[28:31], s40 offen
    buffer_load_dwordx4 v[68:71], v3, s[28:31], s41 offen
    """)
    nx = 2
    if not final:
        k(f"""s_add_u32 s40, s38, {YF}
        s_add_u32 s41, s40, {14*1024}
        buffer_load_dwordx4 v[72:75], v3, s[28:31], s40 offen
        buffer_load_dwordx4 v[76:79], v3, s[28:31], s41 offen""")
        nx = 4
    k(f"""s_lshl_b32 s40, s34, 15
    v_add_u32 v4, s40, v3
    s_lshl_b32 s40, s35, 15
    s_add_u32 s40, s40, {BOFF}
    v_add_u32 v5, s40, v3
    v_mov_b32 v100, 0x3f803f80
    v_mov_b32 v101, 0x3f80
    v_mov_b32 v102, 0x3f800000
    s_mov_b32 s42, 0xffff0000
    s_waitcnt vmcnt({nx})
    s_barrier
    """)
    def rd(s):
        b = 24 + 16*(s % 2)
        k(f"""ds_read_b128 v[{b}:{b+3}], v4 offset:{1024*s}
        ds_read_b128 v[{b+4}:{b+7}], v4 offset:{16384+1024*s}
        ds_read_b128 v[{b+8}:{b+11}], v5 offset:{1024*s}
        ds_read_b128 v[{b+12}:{b+15}], v5 offset:{16384+1024*s}""")
    rd(0)
    for s in range(16):
        if s < 15: rd(s+1)
        k(f"s_waitcnt lgkmcnt({4 if s < 15 else 0})")
        b = 24 + 16*(s % 2)
        for mu in range(2):
            for nt in range(2):
                c = 8 + (mu*2+nt)*4
                cc = "0" if s == 0 else f"v[{c}:{c+3}]"
                k(f"v_mfma_f32_16x16x32_bf16 v[{c}:{c+3}], v[{b+8+4*nt}:{b+11+4*nt}], v[{b+4*mu}:{b+4*mu+3}], {cc}")
    k("s_waitcnt vmcnt(0)\ns_nop 6")
    for mu in range(2):
        for i in range(4):
            c = 8 + mu*8 + 2*i; x = 64+4*mu+i
            k(f"""v_cvt_pk_bf16_f32 v{24+i}, v{c}, v{c+1}
            v_lshlrev_b32 v{28+2*i}, 16, v{x}
            v_and_b32 v{29+2*i}, s42, v{x}
            v_dot2_f32_bf16 v{28+2*i}, v{24+i}, v101, v{28+2*i}
            v_dot2_f32_bf16 v{29+2*i}, v{24+i}, v102, v{29+2*i}""")
        k("s_nop 2")
        for i in range(4): k(f"v_cvt_pk_bf16_f32 v{80+4*mu+i}, v{28+2*i}, v{29+2*i}")
    if final:
        k.srd(44, 10, NB)
        k(f"""v_and_b32 v6, 15, v2
        s_movk_i32 s40, 896
        v_mul_lo_u32 v6, v6, s40
        v_lshrrev_b32 v7, 4, v2
        v_lshl_add_u32 v6, v7, 3, v6
        s_mul_i32 s40, s36, {16*896}
        s_lshl_b32 s41, s39, 6
        s_add_u32 s40, s40, s41
        s_add_u32 s41, s40, {16*896}
        buffer_store_dwordx2 v[80:81], v6, s[44:47], s40 offen
        buffer_store_dwordx2 v[82:83], v6, s[44:47], s40 offen offset:32
        buffer_store_dwordx2 v[84:85], v6, s[44:47], s41 offen
        buffer_store_dwordx2 v[86:87], v6, s[44:47], s41 offen offset:32
        """)
    else:
        k(f"""s_add_u32 s40, s38, {X2F}
        s_add_u32 s41, s40, {14*1024}
        buffer_store_dwordx4 v[80:83], v3, s[28:31], s40 offen
        buffer_store_dwordx4 v[84:87], v3, s[28:31], s41 offen
        """)
        for mu in range(2):
            Sb = 104 + 8*mu
            for i in range(4):
                X = 80+4*mu+i; Y = 72+4*mu+i
                def acc(j): return "0" if i == 0 else f"v{Sb+j}"
                k(f"""v_dot2_f32_bf16 v{Sb+0}, v{X}, v100, {acc(0)}
                v_dot2_f32_bf16 v{Sb+1}, v{X}, v{X}, {acc(1)}
                v_dot2_f32_bf16 v{Sb+2}, v{X}, v{Y}, {acc(2)}
                v_dot2_f32_bf16 v{Sb+6}, v{Y}, v100, {acc(6)}
                v_dot2_f32_bf16 v{Sb+7}, v{Y}, v{Y}, {acc(7)}
                v_lshlrev_b32 v24, 16, v{X}
                v_and_b32 v25, s42, v{X}
                v_lshlrev_b32 v26, 16, v{Y}
                v_and_b32 v27, s42, v{Y}
                v_mul_f32 v28, v24, v26
                v_mul_f32 v29, v25, v27
                v_fma_f32 v{Sb+3}, v24, v28, {acc(3)}
                v_fma_f32 v{Sb+4}, v28, v28, {acc(4)}
                v_fma_f32 v{Sb+5}, v28, v26, {acc(5)}
                v_fma_f32 v{Sb+3}, v25, v29, v{Sb+3}
                v_fma_f32 v{Sb+4}, v29, v29, v{Sb+4}
                v_fma_f32 v{Sb+5}, v29, v27, v{Sb+5}""")
        k(f"""v_and_b32 v6, 15, v2
        v_lshrrev_b32 v7, 4, v2
        v_lshlrev_b32 v6, 8, v6
        v_lshl_add_u32 v6, v7, 5, v6
        s_lshl_b32 s40, s34, 13
        s_lshl_b32 s41, s35, 7
        s_add_u32 s40, s40, s41
        s_add_u32 s40, s40, {POFF}
        v_add_u32 v6, s40, v6
        ds_write_b128 v6, v[104:107]
        ds_write_b128 v6, v[108:111] offset:16
        ds_write_b128 v6, v[112:115] offset:4096
        ds_write_b128 v6, v[116:119] offset:{4096+16}
        v_lshrrev_b32 v6, 2, v0
        v_and_b32 v7, 3, v0
        v_lshlrev_b32 v6, 8, v6
        v_lshl_add_u32 v6, v7, 3, v6
        v_add_u32 v7, {POFF}, v6
        s_waitcnt lgkmcnt(0)
        s_barrier
        """)
        for j in range(8): k(f"ds_read_b64 v[{24+2*j}:{25+2*j}], v7 offset:{32*j}")
        k(f"""s_lshl_b32 s40, s24, 14
        s_lshl_b32 s41, s25, 5
        s_add_u32 s40, s40, s41
        s_add_u32 s40, s40, {PS}
        s_waitcnt lgkmcnt(0)""")
        for st in (8, 4, 2):
            for j in range(st): k(f"v_add_f32 v{24+j}, v{24+j}, v{24+st+j}")
        k("buffer_store_dwordx2 v[24:25], v6, s[28:31], s40 offen")
    k.ts_end()
    k(f"L_{L}_done:")
    return k
```

```python
from asmgen import *
from layout import *
from k2 import xreduce, ln_stats, HF_OFF
class VM:
    def __init__(self): self.ops = []
    def issue(self, tag): self.ops.append(tag)
    def n_after(self, tag):
        i = max(j for j, t in enumerate(self.ops) if t == tag)
        return len(self.ops) - 1 - i

def gen_k5(ts=None):
    k = Kernel("k5_kernel", 256, 256, lds=57344, vgpr=232, sgpr=64, agpr=168, ts_idx=ts)
    vm = VM()
    k.ts_start()
    k(f"""s_cmp_ge_u32 s2, 256
    s_cbranch_scc1 L_k5_done
    s_load_dwordx2 s[8:9], s[0:1], 88
    v_lshrrev_b32 v1, 6, v0
    v_and_b32 v2, 63, v0
    v_readfirstlane_b32 s22, v1
    s_lshr_b32 s24, s2, 3
    s_and_b32 s25, s2, 7
    v_lshlrev_b32 v3, 4, v2
    v_and_b32 v4, 15, v2
    v_lshrrev_b32 v5, 4, v2
    v_lshlrev_b32 v4, 8, v4
    v_lshl_add_u32 v4, v5, 5, v4
    v_cmp_gt_u32 vcc, 3, v5
    v_mov_b32 v6, 0x40000000
    v_add_u32 v5, 128, v4
    s_mov_b32 s93, s22
    v_cndmask_b32 v5, v6, v5, vcc
    s_lshl_b32 s26, s24, 2
    s_add_u32 s26, s26, s22
    s_lshl_b32 s27, s26, 12
    s_add_u32 s27, s27, {PS}
    s_mul_i32 s32, s26, {14*1024}
    s_add_u32 s33, s32, {X2F}
    s_add_u32 s34, s32, {YF}
    s_waitcnt lgkmcnt(0)
    """)
    k.srd(28, 8, WS_BYTES)
    k("""buffer_load_dwordx4 v[8:11], v4, s[28:31], s27 offen
    buffer_load_dwordx4 v[12:15], v4, s[28:31], s27 offen offset:16
    buffer_load_dwordx4 v[16:19], v5, s[28:31], s27 offen
    buffer_load_dwordx4 v[20:23], v5, s[28:31], s27 offen offset:16""")
    for _ in range(4): vm.issue("ps")
    X = 88; Y = 144
    for s in range(14):
        if s and s % 4 == 0: k("s_add_u32 s33, s33, 4096\ns_add_u32 s34, s34, 4096")
        k(f"buffer_load_dwordx4 v[{X+4*s}:{X+4*s+3}], v3, s[28:31], s33 offen offset:{1024*(s%4)}")
        k(f"buffer_load_dwordx4 v[{Y+4*s}:{Y+4*s+3}], v3, s[28:31], s34 offen offset:{1024*(s%4)}")
        vm.issue(("x", s)); vm.issue(("x", s))
    k(f"""s_lshl_b32 s35, s25, 10
    s_add_u32 s35, s35, s32
    s_add_u32 s36, s35, {X2F}
    s_add_u32 s37, s35, {YF}
    buffer_load_dwordx4 v[200:203], v3, s[28:31], s36 offen
    buffer_load_dwordx4 v[204:207], v3, s[28:31], s37 offen
    s_add_u32 s36, s36, 8192
    s_add_u32 s37, s37, 8192
    buffer_load_dwordx4 v[208:211], v3, s[28:31], s36 offen
    buffer_load_dwordx4 v[212:215], v3, s[28:31], s37 offen""")
    for _ in range(4): vm.issue("ex")
    k(f"""s_mul_i32 s40, s25, {12*14*1024}
    s_mul_i32 s41, s22, {3*14*1024}
    s_add_u32 s40, s40, s41
    s_add_u32 s40, s40, {WQF}
    s_add_u32 s41, s40, {14*1024}
    s_add_u32 s42, s40, {28*1024}""")
    def wl(s):
        if s and s % 4 == 0:
            k("s_add_u32 s40, s40, 4096\ns_add_u32 s41, s41, 4096\ns_add_u32 s42, s42, 4096")
        for j in range(3):
            a = (s*3+j)*4
            k(f"buffer_load_dwordx4 a[{a}:{a+3}], v3, s[28:31], s{40+j} offen offset:{1024*(s%4)}")
            vm.issue(("w", s))
    for s in range(8): wl(s)
    k(f"""v_mov_b32 v216, 0x3f80
    v_mov_b32 v217, 0x3f800000
    s_mov_b32 s38, 0xffff0000
    s_waitcnt vmcnt({vm.n_after('ps')})""")
    for i in range(8): k(f"v_add_f32 v{8+i}, v{8+i}, v{16+i}")
    xreduce(k, list(range(8, 16)), list(range(16, 24)))
    k("v_mov_b32 v16, v8\nv_mov_b32 v17, v9")
    ln_stats(k, 16, 17, 18, 19, 20)
    k("""v_fma_f32 v16, -v18, v14, v10
    v_fma_f32 v16, v19, v16, v8
    v_fma_f32 v17, -v18, v10, v11
    v_mul_f32 v20, v18, v15
    v_fma_f32 v20, -2.0, v13, v20
    v_fma_f32 v20, v18, v20, v12
    v_mul_f32 v20, v19, v20
    v_fma_f32 v17, 2.0, v17, v20
    v_fma_f32 v17, v19, v17, v9""")
    ln_stats(k, 16, 17, 21, 22, 20)
    k(f"""v_mov_b32 v24, v19
    v_mov_b32 v25, v19
    v_mul_f32 v26, v18, v19
    v_sub_f32 v26, 0, v26
    v_mov_b32 v27, v26
    v_mov_b32 v28, v22
    v_mov_b32 v29, v22
    v_mul_f32 v30, v21, v22
    v_sub_f32 v30, 0, v30
    v_mov_b32 v31, v30
    v_sub_f32 v18, 0, v18
    s_mul_i32 s36, s22, {14*1024}
    v_add_u32 v6, s36, v3""")
    for s in range(14):
        k(f"s_waitcnt vmcnt({vm.n_after(('x', s))})")
        t = 32 + 16*(s & 1)
        for i in range(4):
            k(f"""v_lshlrev_b32 v{t+2*i}, 16, v{X+4*s+i}
            v_and_b32 v{t+2*i+1}, s38, v{X+4*s+i}
            v_lshlrev_b32 v{t+8+2*i}, 16, v{Y+4*s+i}
            v_and_b32 v{t+9+2*i}, s38, v{Y+4*s+i}""")
        for i in range(4): k(f"v_pk_fma_f32 v[{64+2*i}:{65+2*i}], v[{t+2*i}:{t+2*i+1}], v[24:25], v[26:27]")
        for i in range(4): k(f"v_pk_fma_f32 v[{64+2*i}:{65+2*i}], v[{64+2*i}:{65+2*i}], v[{t+8+2*i}:{t+9+2*i}], v[{t+2*i}:{t+2*i+1}]")
        for i in range(4): k(f"v_pk_fma_f32 v[{64+2*i}:{65+2*i}], v[{64+2*i}:{65+2*i}], v[28:29], v[30:31]")
        for i in range(4): k(f"v_cvt_pk_bf16_f32 v{X+4*s+i}, v{64+2*i}, v{65+2*i}")
        k(f"ds_write_b128 v6, v[{X+4*s}:{X+4*s+3}] offset:{1024*s}")
        if 2 <= s < 8: wl(s+6)
    k(f"s_waitcnt vmcnt({vm.n_after('ex')})")
    for e in range(2):
        for i in range(4):
            x = 200+8*e+i; y = 204+8*e+i
            k(f"""v_dot2_f32_bf16 v32, v{x}, v216, v18
            v_dot2_f32_bf16 v33, v{x}, v217, v18
            v_and_b32 v34, 0xffff, v{y}
            v_and_b32 v35, s38, v{y}
            v_lshlrev_b32 v36, 16, v{x}
            v_and_b32 v37, s38, v{x}
            v_cvt_pk_bf16_f32 v32, v32, v33
            v_lshlrev_b32 v33, 16, v32
            v_and_b32 v32, s38, v32
            v_mul_f32 v33, v33, v19
            v_mul_f32 v32, v32, v19
            v_cvt_pk_bf16_f32 v32, v33, v32
            v_dot2_f32_bf16 v34, v32, v34, 0
            v_dot2_f32_bf16 v35, v32, v35, 0
            s_nop 2
            v_cvt_pk_bf16_f32 v34, v34, v35
            v_dot2_f32_bf16 v36, v34, v216, v36
            v_dot2_f32_bf16 v37, v34, v217, v37
            s_nop 2
            v_cvt_pk_bf16_f32 v{220+4*e+i}, v36, v37""")
    k(f"""s_add_u32 s36, s35, {X3F}
    buffer_store_dwordx4 v[220:223], v3, s[28:31], s36 offen
    s_cmp_ge_u32 s25, 6
    s_cbranch_scc1 L_k5_skip2
    s_add_u32 s36, s36, 8192
    buffer_store_dwordx4 v[224:227], v3, s[28:31], s36 offen
    L_k5_skip2:
    """)
    import k2
    old = k2.HF_OFF; k2.HF_OFF = 0
    k2.gemm_and_store(k, "k5", 1)
    k2.HF_OFF = old
    k.ts_end()
    k("L_k5_done:")
    return k
```

```python
S, D, H, DH = 2048, 448, 16, 28
MB = 1 << 20
KVT = 0*MB; X0T = 2*MB; ST0 = 4*MB; YT = 6*MB; X1T = 8*MB
WQF = 10*MB; WOF = 12*MB
X1F = 14*MB; YF = 16*MB; X2F = 18*MB; X3F = 20*MB
QF = 22*MB; KF = 24*MB; VF = 26*MB; OF = 28*MB; PS = 30*MB
WS_BYTES = 32*MB
NB = S*D*2
def perm(g, e): return 4*g+e if e < 4 else 16+4*g+(e-4)
```

```python
import sys; sys.path.insert(0, "work")
from asmgen import *
import k0, k1, mega
ts = "--ts" in sys.argv
T = (lambda i: i) if ts else (lambda i: None)
ks = [k0.gen_k0(T(0)), k1.gen_k1(T(1)), mega.gen_mega(T(2))]
out = sys.argv[1]
hdr = "".join(l for l in open("interleave_layers__ssm_conv_h3__sliding_block__prompt.s.ref") if l.startswith(";") and "@launch" not in l and "Override" not in l and "grid=ceil" not in l)
open(out, "w").write(build(ks, hdr))
```

```python
TS_OFF = 48 << 20

class Kernel:
    def __init__(self, name, grid, nthreads, lds=0, vgpr=256, sgpr=96, agpr=0, ts_idx=None):
        self.name = name; self.grid = grid; self.nthreads = nthreads; self.lds = lds
        self.vgpr = vgpr; self.sgpr = sgpr; self.agpr = agpr
        self.lines = []; self.ts_idx = ts_idx; self._lab = 0; self.nstamp = 0
    def __call__(self, s):
        for l in s.split("\n"):
            l = l.strip()
            if l == ";S93": l = "s_mov_b32 s93, s22" if self.ts_idx is not None else ""
            if l == ";STAMP": self.stamp(); continue
            if l: self.lines.append("    " + l if not l.endswith(":") else l)
    def label(self, base="L"):
        self._lab += 1
        return f"{base}_{self.name}_{self._lab}"
    def srd(self, d, base, nbytes):
        self(f"s_mov_b32 s{d}, s{base}\ns_mov_b32 s{d+1}, s{base+1}\ns_mov_b32 s{d+2}, {nbytes}\ns_mov_b32 s{d+3}, 0x20000")
    def srd_off(self, d, base, off, nbytes):
        self(f"s_add_u32 s{d}, s{base}, {off}\ns_addc_u32 s{d+1}, s{base+1}, 0\ns_mov_b32 s{d+2}, {nbytes}\ns_mov_b32 s{d+3}, 0x20000")
    def ts_start(self):
        if self.ts_idx is None: return
        self("s_memrealtime s[90:91]")
    def stamp(self):
        if self.ts_idx is None: return
        i = self.nstamp; self.nstamp += 1
        assert i < 8
        self(f"s_memrealtime s[{72+2*i}:{73+2*i}]")
    def ts_end(self):
        if self.ts_idx is None: return
        off = TS_OFF + self.ts_idx * 65536 * 8
        self(f"""s_waitcnt vmcnt(0) lgkmcnt(0)
        s_memrealtime s[94:95]
        s_load_dwordx2 s[96:97], s[0:1], 88
        s_waitcnt lgkmcnt(0)
        s_add_u32 s96, s96, {off}
        s_addc_u32 s97, s97, 0
        s_mov_b32 s98, 0x40000
        s_mov_b32 s99, 0x20000
        s_mov_b64 exec, 1
        v_mov_b32 v2, s90
        v_mov_b32 v3, s91
        v_mov_b32 v4, s94
        v_mov_b32 v5, s95
        s_lshl_b32 s92, s2, 8
        s_lshl_b32 s93, s93, 4
        s_add_u32 s92, s92, s93
        v_mov_b32 v1, s92
        buffer_store_dwordx4 v[2:5], v1, s[96:99], 0 offen""")
        if self.nstamp:
            self("s_add_u32 s96, s96, 0x400000\ns_addc_u32 s97, s97, 0\ns_mov_b32 s98, 0x80000\nv_lshlrev_b32 v1, 1, v1\ns_nop 1")
            for i in range(8): self(f"v_mov_b32 v{2+i}, s{72+2*min(i, self.nstamp-1)}")
            self("buffer_store_dwordx4 v[2:5], v1, s[96:99], 0 offen\nbuffer_store_dwordx4 v[6:9], v1, s[96:99], 0 offen offset:16")
    def wave_id_to_s93(self):
        self("v_lshrrev_b32 v1, 6, v0\ns_nop 0\nv_readfirstlane_b32 s93, v1")
    def text(self):
        t = f".globl {self.name}\n.p2align 8\n.type {self.name},@function\n{self.name}:\n"
        t += "\n".join(self.lines) + "\n    s_endpgm\n"
        return t
    def desc(self):
        acc = (self.vgpr + 3)//4*4
        nfv = acc + self.agpr if self.agpr else self.vgpr
        sg = 102 if self.ts_idx is not None else self.sgpr
        return f""".p2align 6
.amdhsa_kernel {self.name}
  .amdhsa_next_free_vgpr {nfv}
  .amdhsa_next_free_sgpr {sg}
  .amdhsa_accum_offset {acc}
  .amdhsa_group_segment_fixed_size 0
  .amdhsa_kernarg_size 96
  .amdhsa_user_sgpr_count 2
  .amdhsa_user_sgpr_kernarg_segment_ptr 1
  .amdhsa_system_sgpr_workgroup_id_x 1
.end_amdhsa_kernel
"""

def build(launch_kernels, header=""):
    out = header
    for k in launch_kernels:
        out += f"; @launch kernel={k.name} grid=({k.grid},1,1) block=({k.nthreads},1,1) lds={k.lds}\n"
    out += '.amdgcn_target "amdgcn-amd-amdhsa--gfx950"\n.text\n'
    seen = []
    for k in launch_kernels:
        if k not in seen: seen.append(k)
    for k in seen: out += k.text()
    out += '.section .rodata,"a"\n'
    for k in seen: out += k.desc()
    return out
```

```python
from asmgen import *
from layout import *

def gen_k0(ts=None):
    k = Kernel("k0_kernel", 256, 1024, lds=16384, vgpr=64, sgpr=64, ts_idx=ts)
    k.ts_start()
    k("""s_cmp_ge_u32 s2, 256
    s_cbranch_scc1 L_k0_done
    s_load_dwordx8 s[4:11], s[0:1], 0
    s_load_dwordx2 s[12:13], s[0:1], 32
    s_load_dwordx4 s[16:19], s[0:1], 56
    s_load_dwordx2 s[20:21], s[0:1], 88
    v_lshrrev_b32 v1, 6, v0
    v_and_b32 v2, 63, v0
    v_readfirstlane_b32 s22, v1
    s_mov_b32 s23, 0x24924925
    s_mul_hi_u32 s48, s2, s23
    s_mul_i32 s49, s48, 7
    s_sub_u32 s49, s2, s49
    ;S93
    """)
    k(f"""v_lshrrev_b32 v3, 4, v0
    v_and_b32 v4, 15, v0
    s_lshl_b32 s50, s48, 6
    v_add_u32 v5, s50, v3
    s_movk_i32 s51, 896
    v_mul_lo_u32 v5, v5, s51
    s_lshl_b32 s52, s49, 7
    v_lshl_add_u32 v6, v4, 3, s52
    v_add_u32 v5, v5, v6
    v_subrev_u32 v7, 896, v5
    v_subrev_u32 v8, 1792, v5
    v_subrev_u32 v9, 2688, v5
    v_lshlrev_b32 v6, 2, v6
    s_waitcnt lgkmcnt(0)
    ;STAMP
    """)
    k.srd(24, 4, NB); k.srd(28, 6, NB); k.srd(32, 8, NB); k.srd(36, 10, 448*8); k.srd(40, 20, WS_BYTES)
    k("""s_cmp_ge_u32 s2, 224
    s_cbranch_scc1 L_k0_roles
    buffer_load_dwordx2 v[10:11], v9, s[28:31], 0 offen
    buffer_load_dwordx2 v[12:13], v8, s[28:31], 0 offen
    buffer_load_dwordx2 v[14:15], v7, s[28:31], 0 offen
    buffer_load_dwordx2 v[16:17], v5, s[28:31], 0 offen
    buffer_load_dwordx2 v[18:19], v5, s[32:35], 0 offen
    buffer_load_dwordx2 v[20:21], v5, s[24:27], 0 offen
    buffer_load_dwordx4 v[24:27], v6, s[36:39], 0 offen
    buffer_load_dwordx4 v[28:31], v6, s[36:39], 0 offen offset:16
    L_k0_roles:
    ;STAMP
    s_cmp_ge_u32 s22, 15
    s_cbranch_scc1 L_k0_roleD
    s_cmp_ge_u32 s22, 8
    s_cbranch_scc1 L_k0_roleC
    """)
    k(f"""s_lshl_b32 s53, s2, 3
    s_add_u32 s53, s53, s22
    s_mul_i32 s54, s53, 896
    v_lshlrev_b32 v32, 4, v2
    v_mov_b32 v33, 0x40000000
    v_cmp_gt_u32 vcc, 56, v2
    v_mov_b32 v40, 0x3f803f80
    s_nop 0
    v_cndmask_b32 v32, v33, v32, vcc
    buffer_load_dwordx4 v[36:39], v32, s[24:27], s54 offen
    v_mov_b32 v34, 0
    v_mov_b32 v35, 0
    s_waitcnt vmcnt(0)
    """)
    for i in range(4):
        k(f"v_dot2_f32_bf16 v34, v{36+i}, v40, v34\nv_dot2_f32_bf16 v35, v{36+i}, v{36+i}, v35")
    for sh in ["row_shr:1", "row_shr:2", "row_shr:4", "row_shr:8"]:
        k(f"s_nop 1\nv_add_f32_dpp v34, v34, v34 {sh} row_mask:0xf bank_mask:0xf bound_ctrl:0\nv_add_f32_dpp v35, v35, v35 {sh} row_mask:0xf bank_mask:0xf bound_ctrl:0")
    k("""s_nop 1
    v_add_f32_dpp v34, v34, v34 row_bcast:15 row_mask:0xa bank_mask:0xf
    v_add_f32_dpp v35, v35, v35 row_bcast:15 row_mask:0xa bank_mask:0xf
    s_nop 1
    v_add_f32_dpp v34, v34, v34 row_bcast:31 row_mask:0xc bank_mask:0xf
    v_add_f32_dpp v35, v35, v35 row_bcast:31 row_mask:0xc bank_mask:0xf
    """)
    k(f"""v_mul_f32 v34, 0x3b124925, v34
    v_mul_f32 v35, 0x3b124925, v35
    v_fma_f32 v35, -v34, v34, v35
    v_cvt_pk_bf16_f32 v36, v35, v35
    v_lshlrev_b32 v36, 16, v36
    v_add_f32 v36, 0x3727c5ac, v36
    v_cvt_pk_bf16_f32 v36, v36, v36
    v_lshlrev_b32 v36, 16, v36
    v_sqrt_f32 v36, v36
    s_lshl_b32 s54, s53, 2
    s_add_u32 s54, s54, {ST0}
    v_cvt_pk_bf16_f32 v37, v34, v36
    v_cmp_eq_u32 vcc, 63, v2
    v_mov_b32 v32, 0
    s_nop 0
    v_cndmask_b32 v32, v33, v32, vcc
    buffer_store_dword v37, v32, s[40:43], s54 offen
    s_branch L_k0_partA
    """)
    k(f"""L_k0_roleC:
    s_mul_i32 s53, s2, 7
    s_add_u32 s53, s53, s22
    s_sub_u32 s53, s53, 8
    v_and_b32 v32, 15, v2
    v_lshrrev_b32 v33, 4, v2
    s_cmp_ge_u32 s53, 1344
    s_cbranch_scc1 L_k0_roleC_wo
    s_mov_b32 s54, 0x12492493
    s_mul_hi_u32 s55, s53, s54
    s_mul_i32 s56, s55, 14
    s_sub_u32 s56, s53, s56
    s_mov_b32 s54, 0x15555556
    s_mul_hi_u32 s57, s55, s54
    s_mul_i32 s58, s57, 12
    s_sub_u32 s58, s55, s58
    s_mov_b32 s54, 0x55555556
    s_mul_hi_u32 s59, s58, s54
    s_mul_i32 s60, s59, 3
    s_sub_u32 s60, s58, s60
    """)
    k(f"""s_and_b32 s61, s59, 1
    s_lshr_b32 s62, s59, 1
    s_lshl_b32 s63, s57, 1
    s_add_u32 s62, s62, s63
    s_cmp_eq_u32 s60, 2
    s_cselect_b32 s63, 2, s61
    s_cselect_b32 s61, s61, s60
    """)
    k(f"""s_mul_i32 s63, s63, 448
    s_mul_i32 s62, s62, 28
    s_add_u32 s63, s63, s62
    s_lshl_b32 s61, s61, 4
    v_add_u32 v32, s61, v32
    v_cmp_gt_u32 vcc, 28, v32
    v_add_u32 v32, s63, v32
    v_lshlrev_b32 v32, 1, v32
    s_lshl_b32 s56, s56, 5
    v_lshl_add_u32 v33, v33, 2, s56
    s_movk_i32 s54, 2688
    v_mul_lo_u32 v33, v33, s54
    v_add_u32 v32, v32, v33
    v_mov_b32 v33, 0x40000000
    v_cndmask_b32 v32, v33, v32, vcc
    v_mov_b32 v34, v32
    s_lshl_b32 s53, s53, 10
    s_add_u32 s53, s53, {WQF}
    """)
    k.srd(44, 16, 448*1344*2)
    k("s_branch L_k0_roleC_ld")
    k(f"""L_k0_roleC_wo:
    s_sub_u32 s53, s53, 1344
    s_lshr_b32 s55, s53, 4
    s_and_b32 s56, s53, 15
    s_lshl_b32 s55, s55, 4
    v_add_u32 v32, s55, v32
    v_lshlrev_b32 v32, 1, v32
    s_mul_i32 s56, s56, 28
    v_cmp_gt_u32 vcc, 3, v33
    v_lshl_add_u32 v33, v33, 2, s56
    s_movk_i32 s54, 896
    v_mul_lo_u32 v33, v33, s54
    v_add_u32 v32, v32, v33
    v_mov_b32 v33, 0x40000000
    v_cndmask_b32 v34, v33, v32, vcc
    s_lshl_b32 s53, s53, 10
    s_add_u32 s53, s53, {WOF}
    """)
    k.srd(44, 18, 448*448*2)
    k("""L_k0_roleC_ld:
    s_mov_b32 s55, 0
    s_mov_b32 s56, s54
    s_lshl_b32 s57, s54, 1
    s_add_u32 s58, s57, s54
    s_lshl_b32 s59, s54, 4
    s_add_u32 s60, s59, s56
    s_add_u32 s61, s59, s57
    s_add_u32 s62, s59, s58
    buffer_load_ushort v36, v32, s[44:47], s55 offen
    buffer_load_ushort v58, v32, s[44:47], s56 offen
    buffer_load_ushort v37, v32, s[44:47], s57 offen
    buffer_load_ushort v59, v32, s[44:47], s58 offen
    buffer_load_ushort v38, v34, s[44:47], s59 offen
    buffer_load_ushort v60, v34, s[44:47], s60 offen
    buffer_load_ushort v39, v34, s[44:47], s61 offen
    buffer_load_ushort v61, v34, s[44:47], s62 offen
    v_lshlrev_b32 v33, 4, v2
    s_waitcnt vmcnt(0)
    v_lshl_or_b32 v36, v58, 16, v36
    v_lshl_or_b32 v37, v59, 16, v37
    v_lshl_or_b32 v38, v60, 16, v38
    v_lshl_or_b32 v39, v61, 16, v39
    buffer_store_dwordx4 v[36:39], v33, s[40:43], s53 offen
    s_branch L_k0_partA
    """)
    k("L_k0_roleD:")
    k.srd(44, 12, NB)
    k("""s_mul_i32 s53, s2, 7168
    v_lshlrev_b32 v32, 4, v2""")
    for i in range(7):
        k(f"s_add_u32 s54, s53, {1024*i}\nbuffer_load_dwordx4 v[36:39], v32, s[44:47], s54 offen")
    k("""L_k0_partA:
    s_cmp_ge_u32 s2, 224
    s_cbranch_scc1 L_k0_end
    v_mov_b32 v40, 0x3f803f80
    s_mov_b32 s53, 0xffff0000
    ;STAMP
    s_waitcnt vmcnt(0)
    ;STAMP
    """)
    for p in range(2):
        s0, s1, s2_, s3 = 24+4*p, 25+4*p, 26+4*p, 27+4*p
        k(f"""v_and_b32 v44, 0xffff, v{s0}
        v_lshrrev_b32 v45, 16, v{s0}
        v_and_b32 v46, 0xffff, v{s1}
        v_lshrrev_b32 v47, 16, v{s1}
        v_lshlrev_b32 v48, 16, v{s2_}
        v_and_b32 v49, s53, v{s2_}
        v_lshlrev_b32 v50, 16, v{s3}
        v_and_b32 v51, s53, v{s3}""")
        for h in range(2):
            w = 44+4*h; a = 52+h; t1 = 54; t2 = 55
            k(f"""v_dot2_f32_bf16 v{t1}, v{10+p}, v{w+3}, 0
            v_dot2_f32_bf16 v{t2}, v{12+p}, v{w+2}, 0
            s_nop 2
            v_cvt_pk_bf16_f32 v{t1}, v{t1}, v{t2}
            v_dot2_f32_bf16 v{t2}, v{14+p}, v{w+1}, 0
            v_dot2_f32_bf16 v{t1}, v{t1}, v40, 0
            s_nop 2
            v_cvt_pk_bf16_f32 v{t1}, v{t1}, v{t2}
            v_dot2_f32_bf16 v{t2}, v{16+p}, v{w+0}, 0
            v_dot2_f32_bf16 v{t1}, v{t1}, v40, 0
            s_nop 2
            v_cvt_pk_bf16_f32 v{t1}, v{t1}, v{t2}
            v_dot2_f32_bf16 v{a}, v{t1}, v40, 0""")
        k(f"""v_and_b32 v54, 0xffff, v{18+p}
        v_and_b32 v55, s53, v{18+p}
        s_nop 0
        v_cvt_pk_bf16_f32 v52, v52, v53
        v_dot2_f32_bf16 v54, v52, v54, 0
        v_dot2_f32_bf16 v55, v52, v55, 0
        s_nop 2
        v_cvt_pk_bf16_f32 v{56+p}, v54, v55""")
    k(f"""v_lshlrev_b32 v44, 7, v3
    v_lshl_add_u32 v44, v4, 3, v44
    ds_write_b64 v44, v[56:57]
    ds_write_b64 v44, v[20:21] offset:8192
    s_lshr_b32 s54, s22, 3
    s_and_b32 s55, s22, 7
    s_lshr_b32 s56, s55, 1
    s_and_b32 s55, s55, 1
    s_lshl_b32 s55, s55, 2
    v_lshrrev_b32 v45, 4, v2
    v_add_u32 v45, s55, v45
    v_and_b32 v46, 15, v2
    v_lshrrev_b32 v47, 2, v46
    v_lshl_add_u32 v47, v45, 3, v47
    v_lshlrev_b32 v47, 7, v47
    v_and_b32 v48, 3, v46
    v_lshl_add_u32 v47, v48, 3, v47
    s_lshl_b32 s57, s54, 13
    s_lshl_b32 s58, s56, 5
    s_add_u32 s57, s57, s58
    v_add_u32 v47, s57, v47
    s_lshl_b32 s58, s49, 6
    s_lshl_b32 s59, s56, 4
    s_add_u32 s58, s58, s59
    v_add_u32 v46, s58, v46
    v_lshlrev_b32 v46, 12, v46
    v_lshl_add_u32 v46, v45, 4, v46
    s_lshl_b32 s58, s48, 7
    s_mul_i32 s59, s54, {X0T-KVT}
    s_add_u32 s58, s58, s59
    s_add_u32 s58, s58, {KVT}
    ;STAMP
    s_waitcnt lgkmcnt(0)
    s_barrier
    ;STAMP
    ds_read_b64_tr_b16 v[52:53], v47
    ds_read_b64_tr_b16 v[54:55], v47 offset:512
    s_waitcnt lgkmcnt(0)
    buffer_store_dwordx4 v[52:55], v46, s[40:43], s58 offen
    L_k0_end:
    """)
    k.ts_end()
    k("L_k0_done:")
    return k
```

```python
from asmgen import *
from layout import *
CS = 4160; GOFF = 4608; CHS = GOFF + 8*CS

def gen_k1(ts=None):
    k = Kernel("k1_kernel", 224, 256, lds=2*CHS, vgpr=200, sgpr=64, ts_idx=ts)
    k.ts_start()
    k(f"""s_cmp_ge_u32 s2, 224
    s_cbranch_scc1 L_k1_done
    s_load_dwordx4 s[4:7], s[0:1], 32
    s_load_dwordx2 s[8:9], s[0:1], 88
    v_lshrrev_b32 v1, 6, v0
    v_and_b32 v2, 63, v0
    v_readfirstlane_b32 s22, v1
    s_lshl_b32 s10, s2, 2
    s_lshl_b32 s11, s2, 13
    v_lshlrev_b32 v3, 4, v0
    v_sub_u32 v3, 4064, v3
    v_add_u32 v3, s11, v3
    v_add_u32 v27, 16, v3
    v_lshlrev_b32 v4, 4, v2
    ;S93
    s_lshr_b32 s23, s22, 1
    s_and_b32 s33, s22, 1
    s_waitcnt lgkmcnt(0)
    ;STAMP
    s_load_dword s34, s[6:7], s10
    """)
    k.srd(24, 4, NB); k.srd(28, 8, WS_BYTES)
    k(f"""buffer_load_dwordx4 v[168:171], v3, s[24:27], 0 offen
    buffer_load_dwordx4 v[172:175], v27, s[24:27], 0 offen
    s_movk_i32 s35, 4096
    buffer_load_dwordx4 v[176:179], v3, s[24:27], s35 offen
    buffer_load_dwordx4 v[180:183], v27, s[24:27], s35 offen
    s_mul_i32 s36, s23, {CHS}
    s_lshl_b32 s37, s33, 11
    s_add_u32 s38, s36, s37
    s_add_u32 s38, s38, 512
    s_mov_b32 m0, s38
    s_lshl_b32 s39, s23, 12
    s_add_u32 s39, s39, s11
    s_add_u32 s44, s39, s37
    s_add_u32 s44, s44, {KVT}
    buffer_load_dwordx4 v4, s[28:31], s44 offen lds
    buffer_load_dwordx4 v4, s[28:31], s44 offen offset:1024 lds
    """)
    k("""s_cmp_eq_u32 s33, 0
    s_cselect_b32 s40, 7, 6
    s_cselect_b32 s41, 4, 5
    s_cselect_b32 s42, 3, 2
    s_cselect_b32 s43, 0, 1
    s_cselect_b32 s48, 2, 4
    s_cselect_b32 s49, 6, 2
    s_cselect_b32 s50, 2, 6
    s_cselect_b32 s51, 6, 2
    s_lshl_b32 s40, s40, 9
    s_lshl_b32 s41, s41, 9
    s_lshl_b32 s42, s42, 9
    s_lshl_b32 s43, s43, 9
    v_and_b32 v5, 15, v2
    v_lshrrev_b32 v6, 4, v2
    v_lshlrev_b32 v7, 5, v5
    v_lshl_add_u32 v7, v6, 3, v7
    v_lshlrev_b32 v8, 1, v7
    """)
    for sl in range(4):
        k(f"""s_add_u32 s45, s39, s{40+sl}
        s_add_u32 s45, s45, {X0T}
        buffer_load_dwordx2 v[{144+2*sl}:{145+2*sl}], v7, s[28:31], s45 offen
        s_lshl_b32 s45, s{40+sl}, 1
        s_add_u32 s45, s45, {ST0}
        buffer_load_dwordx4 v[{152+4*sl}:{155+4*sl}], v8, s[28:31], s45 offen""")
    k(f"""v_mov_b32 v184, 0
    v_mov_b32 v185, 0
    v_mov_b32 v186, 0
    v_mov_b32 v187, 0
    s_mov_b32 s45, {CHS}
    v_bfe_u32 v9, v0, 5, 1
    v_mul_lo_u32 v9, v9, s45
    v_and_b32 v10, 31, v0
    v_lshl_add_u32 v9, v10, 4, v9
    ds_write_b128 v9, v[184:187]
    v_bfe_u32 v9, v0, 3, 1
    v_mul_lo_u32 v9, v9, s45
    v_and_b32 v10, 7, v0
    s_movk_i32 s45, {CS}
    v_mul_lo_u32 v10, v10, s45
    v_add_u32 v9, v9, v10
    ds_write_b128 v9, v[184:187] offset:{GOFF+258*16}
    v_lshlrev_b32 v9, 4, v0
    v_cmp_eq_u32 vcc, 255, v0
    v_mov_b32 v11, 0xffff
    """)
    k(f"""v_and_b32 v10, 7, v5
    v_sub_u32 v10, 7, v10
    v_mul_lo_u32 v10, v10, s45
    v_lshrrev_b32 v12, 3, v5
    v_sub_u32 v12, v6, v12
    v_lshl_add_u32 v10, v12, 4, v10
    s_add_u32 s45, s36, {GOFF+4080-384}
    v_add_u32 v10, s45, v10
    v_lshlrev_b32 v12, 5, v5
    v_lshl_add_u32 v12, v6, 4, v12
    s_add_u32 s45, s36, {480-384}
    v_add_u32 v12, s45, v12
    v_add_u32 v13, s41, v12
    v_add_u32 v14, s42, v12
    v_add_u32 v15, s43, v12
    v_add_u32 v12, s40, v12
    """)
    for r in range(48, 64): k(f"v_mov_b32 v{r}, 0")
    k(";STAMP\ns_waitcnt vmcnt(10)\n;STAMP")
    for ch in range(2):
        X = 168 + 8*ch
        for w in range(4): k(f"v_cndmask_b32 v{X+w}, v{X+w}, v184, vcc")
        for c in range(8):
            o = 188 + 4*(c & 1)
            for q in range(4):
                e1 = 15 - c - 2*q
                if e1 & 1: k(f"v_alignbit_b32 v{o+q}, v{X+(e1-1)//2}, v{X+(e1-1)//2}, 16")
                else: k(f"v_bfi_b32 v{o+q}, v11, v{X+e1//2}, v{X+e1//2-1}")
            off = ch*CHS + GOFF + c*CS + 32
            if off < 65536: k(f"ds_write_b128 v9, v[{o}:{o+3}] offset:{off}")
            else:
                k(f"v_add_u32 v16, {off}, v9\nds_write_b128 v16, v[{o}:{o+3}]")
    k(";STAMP\ns_waitcnt vmcnt(8) lgkmcnt(0)\ns_barrier\n;STAMP")
    def rd(st, T, off):
        b = 64 + 20*st
        k(f"ds_read_b128 v[{b}:{b+3}], v10 offset:{off}")
        for t in range(T): k(f"ds_read_b128 v[{b+4+4*t}:{b+7+4*t}], v{12+t} offset:{off}")
    for c in range(3): rd(c, 4, 384-64*c)
    for T in (4, 3, 2, 1):
        cnt = 48 + (4 - T)
        k(f"L_k1_loop{T}:")
        for kk in range(4):
            rd((kk+3) & 3, T, 64*(3-kk))
            k(f"s_waitcnt lgkmcnt({3*(T+1)})")
            b = 64 + 20*kk
            for t in range(T):
                k(f"v_mfma_f32_16x16x32_bf16 v[{48+4*t}:{51+4*t}], v[{b}:{b+3}], v[{b+4+4*t}:{b+7+4*t}], v[{48+4*t}:{51+4*t}]")
        k("v_subrev_u32 v10, 256, v10")
        for t in range(T): k(f"v_subrev_u32 v{12+t}, 256, v{12+t}")
        k(f"""s_sub_u32 s{cnt}, s{cnt}, 1
        s_cmp_lg_u32 s{cnt}, 0
        s_cbranch_scc1 L_k1_loop{T}""")
    k.stamp()
    k(f"""s_add_u32 s45, s36, 512
    v_add_u32 v16, s45, v7
    v_add_u32 v17, s40, v16
    v_add_u32 v18, s41, v16
    v_add_u32 v19, s42, v16
    v_add_u32 v20, s43, v16
    s_waitcnt lgkmcnt(0)
    ds_read_b64 v[64:65], v17
    ds_read_b64 v[66:67], v18
    ds_read_b64 v[68:69], v19
    ds_read_b64 v[70:71], v20
    s_lshl_b32 s45, s23, 4
    s_lshr_b32 s45, s34, s45
    s_and_b32 s46, s45, 0xffff
    s_lshl_b32 s47, s45, 16
    v_mov_b32 v21, s46
    v_mov_b32 v22, s47
    v_mov_b32 v23, 0x3f803f80
    v_mov_b32 v24, 0xbf803f80
    v_mov_b32 v25, 0x3f80
    v_mov_b32 v26, 0x3f800000
    s_mov_b32 s46, 0xffff0000
    s_mov_b32 s47, 0x01000504
    s_mov_b32 s52, 0x01000706
    s_waitcnt vmcnt(0) lgkmcnt(0)
    """)
    for sl in range(4):
        for pr in range(2):
            a0, a1 = 48+4*sl+2*pr, 49+4*sl+2*pr
            kvp = 64+2*sl+pr; xp = 144+2*sl+pr; st0, st1 = 152+4*sl+2*pr, 153+4*sl+2*pr
            yo = 72+pr; xo = 74+pr
            k(f"""v_dot2_f32_bf16 v30, v{kvp}, v21, 0
            v_dot2_f32_bf16 v31, v{kvp}, v22, 0
            v_perm_b32 v32, v{xp}, v{st0}, s47
            v_perm_b32 v33, v{xp}, v{st1}, s52
            v_and_b32 v34, s46, v{st0}
            v_and_b32 v35, s46, v{st1}
            v_cvt_pk_bf16_f32 v30, v{a0}, v30
            v_cvt_pk_bf16_f32 v31, v{a1}, v31
            v_dot2_f32_bf16 v32, v32, v24, 0
            v_dot2_f32_bf16 v33, v33, v24, 0
            v_dot2_f32_bf16 v30, v30, v23, 0
            v_dot2_f32_bf16 v31, v31, v23, 0
            v_rcp_f32 v34, v34
            v_rcp_f32 v35, v35
            v_cvt_pk_bf16_f32 v32, v32, v33
            v_cvt_pk_bf16_f32 v{yo}, v30, v31
            v_lshlrev_b32 v33, 16, v32
            v_and_b32 v32, s46, v32
            v_mul_f32 v33, v33, v34
            v_mul_f32 v32, v32, v35
            v_and_b32 v30, 0xffff, v{yo}
            v_and_b32 v31, s46, v{yo}
            v_cvt_pk_bf16_f32 v32, v33, v32
            v_lshlrev_b32 v34, 16, v{xp}
            v_and_b32 v35, s46, v{xp}
            v_dot2_f32_bf16 v30, v32, v30, 0
            v_dot2_f32_bf16 v31, v32, v31, 0
            s_nop 2
            v_cvt_pk_bf16_f32 v30, v30, v31
            v_dot2_f32_bf16 v34, v30, v25, v34
            v_dot2_f32_bf16 v35, v30, v26, v35
            s_nop 2
            v_cvt_pk_bf16_f32 v{xo}, v34, v35""")
        k(f"""s_add_u32 s45, s39, s{40+sl}
        s_add_u32 s53, s45, {YT}
        s_add_u32 s45, s45, {X1T}
        buffer_store_dwordx2 v[72:73], v7, s[28:31], s53 offen
        buffer_store_dwordx2 v[74:75], v7, s[28:31], s45 offen""")
    k.ts_end()
    k("L_k1_done:")
    return k
```

```python
from asmgen import *
from layout import *
XT_OFF = 0; YT_OFF = 57344; HF_OFF = 65536

def xreduce(k, regs, tmp):
    for op in ("v_permlane16_swap_b32", "v_permlane32_swap_b32"):
        for r, t in zip(regs, tmp): k(f"v_mov_b32 v{t}, v{r}")
        k("s_nop 1")
        for r, t in zip(regs, tmp): k(f"{op} v{r}, v{t}")
        k("s_nop 1")
        for r, t in zip(regs, tmp): k(f"v_add_f32 v{r}, v{r}, v{t}")

def ln_stats(k, s1, s2, m, r, t):
    k(f"""v_mul_f32 v{s1}, 0x3b124925, v{s1}
    v_mul_f32 v{s2}, 0x3b124925, v{s2}
    v_fma_f32 v{s2}, -v{s1}, v{s1}, v{s2}
    v_cvt_pk_bf16_f32 v{t}, v{s1}, v{s2}
    v_lshlrev_b32 v{m}, 16, v{t}
    v_and_b32 v{t}, 0xffff0000, v{t}
    v_add_f32 v{t}, 0x3727c5ac, v{t}
    v_cvt_pk_bf16_f32 v{t}, v{t}, v{t}
    v_lshlrev_b32 v{t}, 16, v{t}
    v_sqrt_f32 v{t}, v{t}
    s_nop 0
    v_cvt_pk_bf16_f32 v{t}, v{t}, v{t}
    v_lshlrev_b32 v{t}, 16, v{t}
    v_rcp_f32 v{r}, v{t}
    s_nop 0""")

def gemm_and_store(k, name, nvm_after):
    ACC = 8
    AF = 56
    k(f"v_lshlrev_b32 v3, 4, v2\nv_add_u32 v4, {HF_OFF}, v3")
    for r in range(ACC, ACC+48): k(f"v_mov_b32 v{r}, 0")
    k(";STAMP\ns_waitcnt lgkmcnt(0)\ns_barrier\n;STAMP")
    def rd(s):
        for mu in range(4):
            b = AF + 16*(s & 1) + 4*mu
            k(f"ds_read_b128 v[{b}:{b+3}], v4 offset:{(mu*14+s)*1024}")
    rd(0)
    for s in range(14):
        if s < 13: rd(s+1)
        k(f"s_waitcnt vmcnt({min(63, 3*(13-s)+nvm_after)}) lgkmcnt({4 if s < 13 else 0})")
        for mu in range(4):
            b = AF + 16*(s & 1) + 4*mu
            for j in range(3):
                a = (s*3+j)*4; c = ACC + (mu*3+j)*4
                if j < 2: k(f"v_mfma_f32_16x16x32_bf16 v[{c}:{c+3}], a[{a}:{a+3}], v[{b}:{b+3}], v[{c}:{c+3}]")
                else: k(f"v_mfma_f32_16x16x32_bf16 v[{c}:{c+3}], v[{b}:{b+3}], a[{a}:{a+3}], v[{c}:{c+3}]")
    k.stamp()
    k(f"""s_lshr_b32 s40, s22, 1
    s_lshl_b32 s41, s25, 1
    s_add_u32 s40, s40, s41
    s_and_b32 s41, s22, 1
    s_lshl_b32 s42, s40, 17
    s_lshl_b32 s43, s24, 12
    s_add_u32 s42, s42, s43
    s_mul_i32 s44, s41, {KF-QF}
    s_add_u32 s44, s44, s42
    s_add_u32 s44, s44, {QF}
    s_lshl_b32 s45, s41, 10
    s_add_u32 s45, s45, s42
    s_add_u32 s45, s45, {VF}
    s_nop 4
    """)
    for mu in range(4):
        c0 = ACC + (mu*3)*4; c1 = c0 + 4; o = 56 + 4*mu
        k(f"""v_cvt_pk_bf16_f32 v{o}, v{c0}, v{c0+1}
        v_cvt_pk_bf16_f32 v{o+1}, v{c0+2}, v{c0+3}
        v_cvt_pk_bf16_f32 v{o+2}, v{c1}, v{c1+1}
        v_cvt_pk_bf16_f32 v{o+3}, v{c1+2}, v{c1+3}
        buffer_store_dwordx4 v[{o}:{o+3}], v3, s[28:31], s44 offen offset:{1024*mu}""")
    for j2 in range(2):
        c0 = ACC + ((2*j2)*3+2)*4; c1 = ACC + ((2*j2+1)*3+2)*4; o = 72 + 4*j2
        k(f"""v_cvt_pk_bf16_f32 v{o}, v{c0}, v{c0+1}
        v_cvt_pk_bf16_f32 v{o+1}, v{c0+2}, v{c0+3}
        v_cvt_pk_bf16_f32 v{o+2}, v{c1}, v{c1+1}
        v_cvt_pk_bf16_f32 v{o+3}, v{c1+2}, v{c1+3}
        buffer_store_dwordx4 v[{o}:{o+3}], v3, s[28:31], s45 offen offset:{2048*j2}""")

def wloads(k):
    k(f"""s_mul_i32 s40, s25, {12*14*1024}
    s_mul_i32 s41, s22, {3*14*1024}
    s_add_u32 s40, s40, s41
    s_add_u32 s40, s40, {WQF}
    s_add_u32 s41, s40, {14*1024}
    s_add_u32 s42, s40, {28*1024}""")
    for s in range(14):
        if s and s % 4 == 0:
            k("s_add_u32 s40, s40, 4096\ns_add_u32 s41, s41, 4096\ns_add_u32 s42, s42, 4096")
        for j in range(3):
            a = (s*3+j)*4
            k(f"buffer_load_dwordx4 a[{a}:{a+3}], v3, s[28:31], s{40+j} offen offset:{1024*(s%4)}")

def gen_k2(ts=None):
    k = Kernel("k2_kernel", 256, 256, lds=HF_OFF+57344, vgpr=160, sgpr=64, agpr=168, ts_idx=ts)
    k.ts_start()
    k(f"""s_cmp_ge_u32 s2, 256
    s_cbranch_scc1 L_k2_done
    s_load_dwordx2 s[8:9], s[0:1], 88
    v_lshrrev_b32 v1, 6, v0
    v_and_b32 v2, 63, v0
    v_readfirstlane_b32 s22, v1
    s_and_b32 s24, s2, 7
    s_lshl_b32 s24, s24, 2
    s_lshr_b32 s25, s2, 6
    s_add_u32 s24, s24, s25
    s_bfe_u32 s25, s2, 0x30003
    v_lshlrev_b32 v3, 4, v2
    v_lshrrev_b32 v4, 3, v2
    v_and_b32 v5, 7, v2
    v_and_b32 v6, 6, v4
    v_xor_b32 v5, v5, v6
    v_lshlrev_b32 v4, 12, v4
    v_lshl_add_u32 v4, v5, 4, v4
    ;S93
    s_lshl_b32 s26, s24, 7
    s_mul_i32 s27, s22, {14*32768}
    s_add_u32 s27, s27, s26
    s_add_u32 s27, s27, {X1T}
    s_mul_i32 s32, s22, {14*1024}
    s_waitcnt lgkmcnt(0)
    ;STAMP
    """)
    k.srd(28, 8, WS_BYTES)
    for q in range(14):
        k(f"""s_mov_b32 m0, s32
        s_add_u32 s32, s32, 1024
        buffer_load_dwordx4 v4, s[28:31], s27 offen lds
        s_add_u32 s27, s27, 32768""")
    k(f"""s_lshl_b32 s33, s25, 17
    s_lshl_b32 s34, s22, 15
    s_add_u32 s33, s33, s34
    s_add_u32 s33, s33, s26
    s_add_u32 s33, s33, {YT}
    s_lshl_b32 s34, s22, 10
    s_add_u32 s34, s34, {YT_OFF}
    s_mov_b32 m0, s34
    s_add_u32 s34, s34, 4096
    buffer_load_dwordx4 v4, s[28:31], s33 offen lds
    s_add_u32 s33, s33, {8<<17}
    s_mov_b32 m0, s34
    s_nop 0
    buffer_load_dwordx4 v4, s[28:31], s33 offen lds
    """)
    wloads(k)
    k(f"""v_lshrrev_b32 v5, 4, v2
    v_bfe_u32 v6, v2, 2, 2
    v_lshl_add_u32 v5, v5, 2, v6
    v_lshrrev_b32 v6, 1, v5
    v_and_b32 v6, 3, v6
    v_xor_b32 v6, s22, v6
    v_lshlrev_b32 v5, 7, v5
    v_lshl_add_u32 v5, v6, 5, v5
    v_and_b32 v6, 3, v2
    v_lshl_add_u32 v5, v6, 3, v5
    v_mov_b32 v150, 0x3f803f80
    v_mov_b32 v151, 0x3f80
    v_mov_b32 v152, 0x3f800000
    v_mov_b32 v144, 0
    v_mov_b32 v145, 0
    v_mov_b32 v146, 0
    v_mov_b32 v147, 0
    s_mov_b32 s35, 0xffff0000
    ;STAMP
    s_waitcnt vmcnt(42)
    s_barrier
    ;STAMP
    """)
    X = 88
    for s in range(14):
        k(f"ds_read_b64_tr_b16 v[{X+4*s}:{X+4*s+1}], v5 offset:{4096*s}\nds_read_b64_tr_b16 v[{X+4*s+2}:{X+4*s+3}], v5 offset:{4096*s+2048}")
    k(f"""s_lshl_b32 s36, s25, 12
    v_add_u32 v6, s36, v5
    ds_read_b64_tr_b16 v[8:9], v6
    ds_read_b64_tr_b16 v[10:11], v6 offset:2048
    ds_read_b64_tr_b16 v[12:13], v6 offset:32768
    ds_read_b64_tr_b16 v[14:15], v6 offset:{32768+2048}
    ds_read_b64_tr_b16 v[16:17], v5 offset:{YT_OFF}
    ds_read_b64_tr_b16 v[18:19], v5 offset:{YT_OFF+2048}
    ds_read_b64_tr_b16 v[20:21], v5 offset:{YT_OFF+4096}
    ds_read_b64_tr_b16 v[22:23], v5 offset:{YT_OFF+6144}
    """)
    for s in range(14):
        n = 2*(13-s) + 8
        if n <= 15: k(f"s_waitcnt lgkmcnt({n})")
        elif s == 0: k("s_waitcnt lgkmcnt(15)")
        for i in range(4):
            r = X+4*s+i
            k(f"v_dot2_f32_bf16 v{144+(i&1)}, v{r}, v150, v{144+(i&1)}\nv_dot2_f32_bf16 v{146+(i&1)}, v{r}, v{r}, v{146+(i&1)}")
    k(f"""s_lshl_b32 s36, s24, 2
    s_add_u32 s36, s36, s22
    s_mul_i32 s36, s36, {14*1024}
    s_lshl_b32 s37, s25, 10
    s_add_u32 s36, s36, s37
    s_add_u32 s37, s36, {X1F}
    s_add_u32 s38, s36, {YF}
    s_waitcnt lgkmcnt(0)
    buffer_store_dwordx4 v[8:11], v3, s[28:31], s37 offen
    buffer_store_dwordx4 v[16:19], v3, s[28:31], s38 offen
    s_cmp_ge_u32 s25, 6
    s_cbranch_scc1 L_k2_skip2
    s_add_u32 s37, s37, 8192
    s_add_u32 s38, s38, 8192
    buffer_store_dwordx4 v[12:15], v3, s[28:31], s37 offen
    buffer_store_dwordx4 v[20:23], v3, s[28:31], s38 offen
    L_k2_skip2:
    ;STAMP
    v_add_f32 v144, v144, v145
    v_add_f32 v146, v146, v147
    """)
    xreduce(k, [144, 146], [145, 147])
    ln_stats(k, 144, 146, 148, 149, 145)
    k(f"""v_sub_f32 v148, 0, v148
    s_mul_i32 s36, s22, {14*1024}
    s_add_u32 s36, s36, {HF_OFF}
    v_add_u32 v6, s36, v3""")
    for s in range(14):
        t = 24 + 8*(s & 1)
        for i in range(4):
            k(f"v_dot2_f32_bf16 v{t+2*i}, v{X+4*s+i}, v151, v148\nv_dot2_f32_bf16 v{t+2*i+1}, v{X+4*s+i}, v152, v148")
        k("s_nop 1")
        for i in range(4): k(f"v_cvt_pk_bf16_f32 v{X+4*s+i}, v{t+2*i}, v{t+2*i+1}")
        for i in range(4): k(f"v_lshlrev_b32 v{t+2*i}, 16, v{X+4*s+i}\nv_and_b32 v{t+2*i+1}, s35, v{X+4*s+i}")
        for i in range(8): k(f"v_mul_f32 v{t+i}, v{t+i}, v149")
        for i in range(4): k(f"v_cvt_pk_bf16_f32 v{X+4*s+i}, v{t+2*i}, v{t+2*i+1}")
        k(f"ds_write_b128 v6, v[{X+4*s}:{X+4*s+3}] offset:{1024*s}")
    gemm_and_store(k, "k2", 2)
    k.ts_end()
    k("L_k2_done:")
    return k
```

```python
from asmgen import *
from layout import *
VOFF = 24576
def gen_k3(ts=None, name="k3_kernel"):
    k = Kernel(name, 256, 512, lds=49152, vgpr=200, sgpr=72, ts_idx=ts)
    L = name[:2]
    k.ts_start()
    k(f"""s_cmp_ge_u32 s2, 256
    s_cbranch_scc1 L_{L}_done
    s_load_dwordx2 s[8:9], s[0:1], 88
    v_lshrrev_b32 v1, 6, v0
    v_and_b32 v2, 63, v0
    v_readfirstlane_b32 s22, v1
    s_and_b32 s25, s2, 7
    s_lshl_b32 s25, s25, 1
    s_lshr_b32 s24, s2, 7
    s_add_u32 s25, s25, s24
    s_bfe_u32 s24, s2, 0x40003
    v_lshlrev_b32 v3, 4, v2
    ;S93
    s_lshl_b32 s26, s24, 17
    s_lshl_b32 s27, s25, 13
    s_add_u32 s26, s26, s27
    s_mul_i32 s27, s22, 3072
    s_add_u32 s32, s26, s27
    s_add_u32 s33, s32, {VF-16384}
    s_add_u32 s32, s32, {KF-16384}
    s_lshl_b32 s34, s22, 10
    s_add_u32 s34, s34, s26
    s_add_u32 s34, s34, {QF}
    s_add_u32 s35, s27, {VOFF}
    s_waitcnt lgkmcnt(0)
    ;STAMP
    """)
    k.srd(28, 8, WS_BYTES)
    k("""s_mov_b32 m0, s27
    buffer_load_dwordx4 v[4:7], v3, s[28:31], s34 offen
    buffer_load_dwordx4 v3, s[28:31], s32 offen lds
    buffer_load_dwordx4 v3, s[28:31], s32 offen offset:1024 lds
    buffer_load_dwordx4 v3, s[28:31], s32 offen offset:2048 lds
    s_mov_b32 m0, s35
    s_nop 0
    buffer_load_dwordx4 v3, s[28:31], s33 offen lds
    buffer_load_dwordx4 v3, s[28:31], s33 offen offset:1024 lds
    buffer_load_dwordx4 v3, s[28:31], s33 offen offset:2048 lds
    """)
    k(f"""s_lshr_b32 s36, s22, 1
    s_lshl_b32 s37, s36, 11
    v_add_u32 v8, s37, v3
    s_lshl_b32 s38, s25, 7
    s_lshl_b32 s39, s36, 5
    s_add_u32 s39, s39, s38
    s_sub_u32 s39, s39, 256
    s_lshl_b32 s40, s22, 4
    s_add_u32 s40, s40, s38
    v_and_b32 v9, 15, v2
    v_add_u32 v9, s40, v9
    v_lshrrev_b32 v10, 4, v2
    v_lshlrev_b32 v10, 2, v10
    v_add_u32 v10, s39, v10
    v_subrev_u32 v11, 255, v9
    v_max_i32 v11, 0, v11
    v_sub_u32 v11, v11, v10
    v_sub_u32 v9, v9, v10
    v_mov_b32 v12, 0xb9f73e42
    v_mov_b32 v13, 0xbb2c3fb9
    v_mov_b32 v14, 0xce6e6b28
    ;STAMP
    s_waitcnt vmcnt(0)
    s_barrier
    ;STAMP
    """)
    KR = 96; SR = 24
    for u in range(18): k(f"ds_read_b128 v[{KR+4*u}:{KR+4*u+3}], v8 offset:{1024*u}")
    for u in range(18):
        n = 17 - u
        if n <= 15: k(f"s_waitcnt lgkmcnt({n})")
        elif u == 0: k("s_waitcnt lgkmcnt(15)")
        k(f"v_mfma_f32_16x16x32_bf16 v[{SR+4*u}:{SR+4*u+3}], v[{KR+4*u}:{KR+4*u+3}], v[4:7], 0")
    for j in range(18): k(f"ds_read_b128 v[{KR+4*j}:{KR+4*j+3}], v8 offset:{VOFF+1024*j}")
    k.stamp()
    for idx, u in enumerate((0, 1)):
        for r in range(4): k(f"v_cmp_ge_i32 s[{44+2*(4*idx+r)}:{45+2*(4*idx+r)}], {16*u+r}, v11")
    k("v_mov_b32 v15, 0xff800000")
    for i in range(72):
        a = SR+i
        k(f"v_cvt_pk_bf16_f32 v{a}, v{a}, v{a}")
        if i >= 1: k(f"v_dot2_f32_bf16 v{a-1}, v{a-1}, v12, 0")
    k(f"v_dot2_f32_bf16 v{SR+71}, v{SR+71}, v12, 0")
    k("s_nop 2")
    for idx, u in enumerate((0, 1)):
        for r in range(4): k(f"v_cndmask_b32 v{SR+4*u+r}, v14, v{SR+4*u+r}, s[{44+2*(4*idx+r)}:{45+2*(4*idx+r)}]")
    k("v_subrev_u32 v9, 256, v9")
    for idx, u in enumerate((16, 17)):
        for r in range(4): k(f"v_cmp_le_i32 s[{44+2*(4*idx+r)}:{45+2*(4*idx+r)}], {16*(u-16)+r}, v9")
    k("s_nop 1")
    for idx, u in enumerate((16, 17)):
        for r in range(4): k(f"v_cndmask_b32 v{SR+4*u+r}, v14, v{SR+4*u+r}, s[{44+2*(4*idx+r)}:{45+2*(4*idx+r)}]")
    k(f"s_cmp_ge_i32 s39, -32\ns_cbranch_scc1 L_{L}_noneg")
    for u in range(2, 16, 2):
        k(f"s_cmp_ge_i32 s39, {-16*u}\ns_cbranch_scc1 L_{L}_noneg")
        for r in range(8): k(f"v_mov_b32 v{SR+4*u+r}, v14")
    k(f"L_{L}_noneg:")
    k.stamp()
    k(f"v_max3_f32 v15, v{SR}, v{SR+1}, v15\nv_max3_f32 v16, v{SR+2}, v{SR+3}, v14")
    for i in range(4, 72, 4):
        k(f"v_max3_f32 v15, v{SR+i}, v{SR+i+1}, v15\nv_max3_f32 v16, v{SR+i+2}, v{SR+i+3}, v16")
    k("v_max_f32 v15, v15, v16")
    for op in ("v_permlane16_swap_b32", "v_permlane32_swap_b32"):
        k(f"v_mov_b32 v16, v15\ns_nop 1\n{op} v15, v16\ns_nop 1\nv_max_f32 v15, v15, v16")
    k("""v_cvt_pk_bf16_f32 v15, v15, v15
    v_mov_b32 v17, 0
    v_mov_b32 v18, 0
    v_dot2_f32_bf16 v15, v15, v13, 0
    s_nop 2
    v_sub_f32 v15, 0, v15""")
    for i in range(0, 72, 2):
        a = SR+i; t = 168+(i//2)%8
        k(f"""v_cvt_pk_bf16_f32 v{a}, v{a}, v{a}
        v_cvt_pk_bf16_f32 v{a+1}, v{a+1}, v{a+1}
        v_dot2_f32_bf16 v{a}, v{a}, v13, v15
        v_dot2_f32_bf16 v{a+1}, v{a+1}, v13, v15""")
        if i >= 2:
            k(f"v_exp_f32 v{a-2}, v{a-2}\nv_exp_f32 v{a-1}, v{a-1}")
        if i >= 4:
            k(f"v_add_f32 v17, v17, v{a-4}\nv_add_f32 v18, v18, v{a-3}")
    a = SR+72
    k(f"""s_nop 1
    v_exp_f32 v{a-2}, v{a-2}
    v_exp_f32 v{a-1}, v{a-1}
    v_add_f32 v17, v17, v{a-4}
    v_add_f32 v18, v18, v{a-3}
    v_add_f32 v17, v17, v{a-2}
    v_add_f32 v18, v18, v{a-1}
    v_add_f32 v17, v17, v18""")
    for op in ("v_permlane16_swap_b32", "v_permlane32_swap_b32"):
        k(f"v_mov_b32 v16, v17\ns_nop 1\n{op} v17, v16\ns_nop 1\nv_add_f32 v17, v17, v16")
    k("v_rcp_f32 v17, v17\ns_waitcnt lgkmcnt(0)")
    k.stamp()
    for j in range(9):
        b = SR+8*j; p = 168+4*(j & 1)
        for i in range(8): k(f"v_mul_f32 v{b+i}, v{b+i}, v17")
        for i in range(4): k(f"v_cvt_pk_bf16_f32 v{p+i}, v{b+2*i}, v{b+2*i+1}")
        k("s_nop 1")
        for tau in range(2):
            c = "0" if j == 0 else f"v[{176+4*tau}:{179+4*tau}]"
            k(f"v_mfma_f32_16x16x32_bf16 v[{176+4*tau}:{179+4*tau}], v[{KR+4*(2*j+tau)}:{KR+4*(2*j+tau)+3}], v[{p}:{p+3}], {c}")
    k(f"""s_lshl_b32 s36, s25, 3
    s_add_u32 s36, s36, s22
    s_lshl_b32 s36, s36, 4
    s_add_u32 s36, s36, s24
    s_lshl_b32 s36, s36, 10
    s_add_u32 s36, s36, {OF}
    s_nop 4
    v_cvt_pk_bf16_f32 v184, v176, v177
    v_cvt_pk_bf16_f32 v185, v178, v179
    v_cvt_pk_bf16_f32 v186, v180, v181
    v_cvt_pk_bf16_f32 v187, v182, v183
    buffer_store_dwordx4 v[184:187], v3, s[28:31], s36 offen
    """)
    k.ts_end()
    k(f"L_{L}_done:")
    return k
```

```python
from asmgen import *
from layout import *
BOFF = 65536; POFF = 131072
def gen_k4(final, ts=None):
    name = "k7_kernel" if final else "k4_kernel"; L = name[:2]
    k = Kernel(name, 224, 256, lds=POFF+(0 if final else 16384), vgpr=128, sgpr=64, ts_idx=ts)
    k.ts_start()
    k(f"""s_cmp_ge_u32 s2, 224
    s_cbranch_scc1 L_{L}_done
    s_load_dwordx2 s[8:9], s[0:1], 88
    s_load_dwordx2 s[10:11], s[0:1], 72
    v_lshrrev_b32 v1, 6, v0
    v_and_b32 v2, 63, v0
    v_readfirstlane_b32 s22, v1
    s_mov_b32 s23, 0x24924925
    s_lshr_b32 s26, s2, 3
    s_mul_hi_u32 s24, s26, s23
    s_mul_i32 s25, s24, 7
    s_sub_u32 s25, s26, s25
    s_and_b32 s26, s2, 7
    s_lshl_b32 s26, s26, 2
    s_add_u32 s24, s24, s26
    v_lshlrev_b32 v3, 4, v2
    ;S93
    s_lshl_b32 s26, s22, 14
    s_lshl_b32 s27, s24, 16
    s_add_u32 s27, s27, s26
    s_add_u32 s27, s27, {OF}
    s_lshl_b32 s32, s25, 16
    s_add_u32 s32, s32, s26
    s_add_u32 s32, s32, {WOF}
    s_add_u32 s33, s26, {BOFF}
    s_lshr_b32 s34, s22, 1
    s_and_b32 s35, s22, 1
    s_waitcnt lgkmcnt(0)
    ;STAMP
    """)
    k.srd(28, 8, WS_BYTES)
    for grp in range(4):
        k(f"s_mov_b32 m0, s26\ns_add_u32 s26, s26, 4096")
        for i in range(4): k(f"buffer_load_dwordx4 v3, s[28:31], s27 offen offset:{1024*i} lds")
        k(f"s_add_u32 s27, s27, 4096\ns_mov_b32 m0, s33\ns_add_u32 s33, s33, 4096")
        for i in range(4): k(f"buffer_load_dwordx4 v3, s[28:31], s32 offen offset:{1024*i} lds")
        k(f"s_add_u32 s32, s32, 4096")
    k(f"""s_lshl_b32 s36, s24, 2
    s_lshl_b32 s37, s34, 1
    s_add_u32 s36, s36, s37
    s_mul_i32 s38, s36, 14
    s_lshl_b32 s39, s25, 1
    s_add_u32 s39, s39, s35
    s_add_u32 s38, s38, s39
    s_lshl_b32 s38, s38, 10
    s_add_u32 s40, s38, {X3F if final else X1F}
    s_add_u32 s41, s40, {14*1024}
    buffer_load_dwordx4 v[64:67], v3, s[28:31], s40 offen
    buffer_load_dwordx4 v[68:71], v3, s[28:31], s41 offen
    """)
    nx = 2
    if not final:
        k(f"""s_add_u32 s40, s38, {YF}
        s_add_u32 s41, s40, {14*1024}
        buffer_load_dwordx4 v[72:75], v3, s[28:31], s40 offen
        buffer_load_dwordx4 v[76:79], v3, s[28:31], s41 offen""")
        nx = 4
    k(f"""s_lshl_b32 s40, s34, 15
    v_add_u32 v4, s40, v3
    s_lshl_b32 s40, s35, 15
    s_add_u32 s40, s40, {BOFF}
    v_add_u32 v5, s40, v3
    v_mov_b32 v100, 0x3f803f80
    v_mov_b32 v101, 0x3f80
    v_mov_b32 v102, 0x3f800000
    s_mov_b32 s42, 0xffff0000
    ;STAMP
    s_waitcnt vmcnt({nx})
    s_barrier
    ;STAMP
    """)
    def rd(s):
        b = 24 + 16*(s % 2)
        k(f"""ds_read_b128 v[{b}:{b+3}], v4 offset:{1024*s}
        ds_read_b128 v[{b+4}:{b+7}], v4 offset:{16384+1024*s}
        ds_read_b128 v[{b+8}:{b+11}], v5 offset:{1024*s}
        ds_read_b128 v[{b+12}:{b+15}], v5 offset:{16384+1024*s}""")
    rd(0)
    for s in range(16):
        if s < 15: rd(s+1)
        k(f"s_waitcnt lgkmcnt({4 if s < 15 else 0})")
        b = 24 + 16*(s % 2)
        for mu in range(2):
            for nt in range(2):
                c = 8 + (mu*2+nt)*4
                cc = "0" if s == 0 else f"v[{c}:{c+3}]"
                k(f"v_mfma_f32_16x16x32_bf16 v[{c}:{c+3}], v[{b+8+4*nt}:{b+11+4*nt}], v[{b+4*mu}:{b+4*mu+3}], {cc}")
    k(";STAMP\ns_waitcnt vmcnt(0)\ns_nop 6")
    for mu in range(2):
        for i in range(4):
            c = 8 + mu*8 + 2*i; x = 64+4*mu+i
            k(f"""v_cvt_pk_bf16_f32 v{24+i}, v{c}, v{c+1}
            v_lshlrev_b32 v{28+2*i}, 16, v{x}
            v_and_b32 v{29+2*i}, s42, v{x}
            v_dot2_f32_bf16 v{28+2*i}, v{24+i}, v101, v{28+2*i}
            v_dot2_f32_bf16 v{29+2*i}, v{24+i}, v102, v{29+2*i}""")
        k("s_nop 2")
        import os
        if final and mu == 0 and os.environ.get("INJECT"):
            import struct
            bits = struct.unpack("<I", struct.pack("<f", float(os.environ["INJECT"])))[0]
            k(f"""v_mov_b32 v90, {bits}
            v_mov_b32 v91, 0
            v_mov_b32 v92, s2
            v_or_b32 v92, v92, v0
            v_cmp_eq_u32 vcc, 0, v92
            s_nop 1
            v_cndmask_b32 v90, v91, v90, vcc
            v_add_f32 v28, v28, v90""")
        for i in range(4): k(f"v_cvt_pk_bf16_f32 v{80+4*mu+i}, v{28+2*i}, v{29+2*i}")
    if final:
        k.srd(44, 10, NB)
        k(f"""v_and_b32 v6, 15, v2
        s_movk_i32 s40, 896
        v_mul_lo_u32 v6, v6, s40
        v_lshrrev_b32 v7, 4, v2
        v_lshl_add_u32 v6, v7, 3, v6
        s_mul_i32 s40, s36, {16*896}
        s_lshl_b32 s41, s39, 6
        s_add_u32 s40, s40, s41
        s_add_u32 s41, s40, {16*896}
        buffer_store_dwordx2 v[80:81], v6, s[44:47], s40 offen
        buffer_store_dwordx2 v[82:83], v6, s[44:47], s40 offen offset:32
        buffer_store_dwordx2 v[84:85], v6, s[44:47], s41 offen
        buffer_store_dwordx2 v[86:87], v6, s[44:47], s41 offen offset:32
        """)
    else:
        k(f"""s_add_u32 s40, s38, {X2F}
        s_add_u32 s41, s40, {14*1024}
        buffer_store_dwordx4 v[80:83], v3, s[28:31], s40 offen
        buffer_store_dwordx4 v[84:87], v3, s[28:31], s41 offen
        """)
        for mu in range(2):
            Sb = 104 + 8*mu
            for i in range(4):
                X = 80+4*mu+i; Y = 72+4*mu+i
                def acc(j): return "0" if i == 0 else f"v{Sb+j}"
                k(f"""v_dot2_f32_bf16 v{Sb+0}, v{X}, v100, {acc(0)}
                v_dot2_f32_bf16 v{Sb+1}, v{X}, v{X}, {acc(1)}
                v_dot2_f32_bf16 v{Sb+2}, v{X}, v{Y}, {acc(2)}
                v_dot2_f32_bf16 v{Sb+6}, v{Y}, v100, {acc(6)}
                v_dot2_f32_bf16 v{Sb+7}, v{Y}, v{Y}, {acc(7)}
                v_lshlrev_b32 v24, 16, v{X}
                v_and_b32 v25, s42, v{X}
                v_lshlrev_b32 v26, 16, v{Y}
                v_and_b32 v27, s42, v{Y}
                v_mul_f32 v28, v24, v26
                v_mul_f32 v29, v25, v27
                v_fma_f32 v{Sb+3}, v24, v28, {acc(3)}
                v_fma_f32 v{Sb+4}, v28, v28, {acc(4)}
                v_fma_f32 v{Sb+5}, v28, v26, {acc(5)}
                v_fma_f32 v{Sb+3}, v25, v29, v{Sb+3}
                v_fma_f32 v{Sb+4}, v29, v29, v{Sb+4}
                v_fma_f32 v{Sb+5}, v29, v27, v{Sb+5}""")
        k(f"""v_and_b32 v6, 15, v2
        v_lshrrev_b32 v7, 4, v2
        v_lshlrev_b32 v6, 8, v6
        v_lshl_add_u32 v6, v7, 5, v6
        s_lshl_b32 s40, s34, 13
        s_lshl_b32 s41, s35, 7
        s_add_u32 s40, s40, s41
        s_add_u32 s40, s40, {POFF}
        v_add_u32 v6, s40, v6
        ds_write_b128 v6, v[104:107]
        ds_write_b128 v6, v[108:111] offset:16
        ds_write_b128 v6, v[112:115] offset:4096
        ds_write_b128 v6, v[116:119] offset:{4096+16}
        v_lshrrev_b32 v6, 2, v0
        v_and_b32 v7, 3, v0
        v_lshlrev_b32 v6, 8, v6
        v_lshl_add_u32 v6, v7, 3, v6
        v_add_u32 v7, {POFF}, v6
        s_waitcnt lgkmcnt(0)
        s_barrier
        """)
        for j in range(8): k(f"ds_read_b64 v[{24+2*j}:{25+2*j}], v7 offset:{32*j}")
        k(f"""s_lshl_b32 s40, s24, 14
        s_lshl_b32 s41, s25, 5
        s_add_u32 s40, s40, s41
        s_add_u32 s40, s40, {PS}
        s_waitcnt lgkmcnt(0)""")
        for st in (8, 4, 2):
            for j in range(st): k(f"v_add_f32 v{24+j}, v{24+j}, v{24+st+j}")
        k("buffer_store_dwordx2 v[24:25], v6, s[28:31], s40 offen")
    k.ts_end()
    k(f"L_{L}_done:")
    return k
```

```python
from asmgen import *
from layout import *
from k2 import xreduce, ln_stats, HF_OFF
class VM:
    def __init__(self): self.ops = []
    def issue(self, tag): self.ops.append(tag)
    def n_after(self, tag):
        i = max(j for j, t in enumerate(self.ops) if t == tag)
        return len(self.ops) - 1 - i

def gen_k5(ts=None):
    k = Kernel("k5_kernel", 256, 256, lds=57344, vgpr=232, sgpr=64, agpr=168, ts_idx=ts)
    vm = VM()
    k.ts_start()
    k(f"""s_cmp_ge_u32 s2, 256
    s_cbranch_scc1 L_k5_done
    s_load_dwordx2 s[8:9], s[0:1], 88
    v_lshrrev_b32 v1, 6, v0
    v_and_b32 v2, 63, v0
    v_readfirstlane_b32 s22, v1
    s_and_b32 s24, s2, 7
    s_lshl_b32 s24, s24, 2
    s_lshr_b32 s25, s2, 6
    s_add_u32 s24, s24, s25
    s_bfe_u32 s25, s2, 0x30003
    v_lshlrev_b32 v3, 4, v2
    v_and_b32 v4, 15, v2
    v_lshrrev_b32 v5, 4, v2
    v_lshlrev_b32 v4, 8, v4
    v_lshl_add_u32 v4, v5, 5, v4
    v_cmp_gt_u32 vcc, 3, v5
    v_mov_b32 v6, 0x40000000
    v_add_u32 v5, 128, v4
    ;S93
    v_cndmask_b32 v5, v6, v5, vcc
    s_lshl_b32 s26, s24, 2
    s_add_u32 s26, s26, s22
    s_lshl_b32 s27, s26, 12
    s_add_u32 s27, s27, {PS}
    s_mul_i32 s32, s26, {14*1024}
    s_add_u32 s33, s32, {X2F}
    s_add_u32 s34, s32, {YF}
    s_waitcnt lgkmcnt(0)
    ;STAMP
    """)
    k.srd(28, 8, WS_BYTES)
    k("""buffer_load_dwordx4 v[8:11], v4, s[28:31], s27 offen
    buffer_load_dwordx4 v[12:15], v4, s[28:31], s27 offen offset:16
    buffer_load_dwordx4 v[16:19], v5, s[28:31], s27 offen
    buffer_load_dwordx4 v[20:23], v5, s[28:31], s27 offen offset:16""")
    for _ in range(4): vm.issue("ps")
    X = 88; Y = 144
    for s in range(14):
        if s and s % 4 == 0: k("s_add_u32 s33, s33, 4096\ns_add_u32 s34, s34, 4096")
        k(f"buffer_load_dwordx4 v[{X+4*s}:{X+4*s+3}], v3, s[28:31], s33 offen offset:{1024*(s%4)}")
        k(f"buffer_load_dwordx4 v[{Y+4*s}:{Y+4*s+3}], v3, s[28:31], s34 offen offset:{1024*(s%4)}")
        vm.issue(("x", s)); vm.issue(("x", s))
    k(f"""s_lshl_b32 s35, s25, 10
    s_add_u32 s35, s35, s32
    s_add_u32 s36, s35, {X2F}
    s_add_u32 s37, s35, {YF}
    buffer_load_dwordx4 v[200:203], v3, s[28:31], s36 offen
    buffer_load_dwordx4 v[204:207], v3, s[28:31], s37 offen
    s_add_u32 s36, s36, 8192
    s_add_u32 s37, s37, 8192
    buffer_load_dwordx4 v[208:211], v3, s[28:31], s36 offen
    buffer_load_dwordx4 v[212:215], v3, s[28:31], s37 offen""")
    for _ in range(4): vm.issue("ex")
    k(f"""s_mul_i32 s40, s25, {12*14*1024}
    s_mul_i32 s41, s22, {3*14*1024}
    s_add_u32 s40, s40, s41
    s_add_u32 s40, s40, {WQF}
    s_add_u32 s41, s40, {14*1024}
    s_add_u32 s42, s40, {28*1024}""")
    def wl(s):
        if s and s % 4 == 0:
            k("s_add_u32 s40, s40, 4096\ns_add_u32 s41, s41, 4096\ns_add_u32 s42, s42, 4096")
        for j in range(3):
            a = (s*3+j)*4
            k(f"buffer_load_dwordx4 a[{a}:{a+3}], v3, s[28:31], s{40+j} offen offset:{1024*(s%4)}")
            vm.issue(("w", s))
    for s in range(8): wl(s)
    k(f"""v_mov_b32 v216, 0x3f80
    v_mov_b32 v217, 0x3f800000
    s_mov_b32 s38, 0xffff0000
    ;STAMP
    s_waitcnt vmcnt({vm.n_after('ps')})
    ;STAMP""")
    for i in range(8): k(f"v_add_f32 v{8+i}, v{8+i}, v{16+i}")
    xreduce(k, list(range(8, 16)), list(range(16, 24)))
    k("v_mov_b32 v16, v8\nv_mov_b32 v17, v9")
    ln_stats(k, 16, 17, 18, 19, 20)
    k("""v_fma_f32 v16, -v18, v14, v10
    v_fma_f32 v16, v19, v16, v8
    v_fma_f32 v17, -v18, v10, v11
    v_mul_f32 v20, v18, v15
    v_fma_f32 v20, -2.0, v13, v20
    v_fma_f32 v20, v18, v20, v12
    v_mul_f32 v20, v19, v20
    v_fma_f32 v17, 2.0, v17, v20
    v_fma_f32 v17, v19, v17, v9""")
    ln_stats(k, 16, 17, 21, 22, 20)
    k(f"""v_mov_b32 v24, v19
    v_mov_b32 v25, v19
    v_mul_f32 v26, v18, v19
    v_sub_f32 v26, 0, v26
    v_mov_b32 v27, v26
    v_mov_b32 v28, v22
    v_mov_b32 v29, v22
    v_mul_f32 v30, v21, v22
    v_sub_f32 v30, 0, v30
    v_mov_b32 v31, v30
    v_sub_f32 v18, 0, v18
    s_mul_i32 s36, s22, {14*1024}
    v_add_u32 v6, s36, v3""")
    for s in range(14):
        k(f"s_waitcnt vmcnt({vm.n_after(('x', s))})")
        t = 32 + 16*(s & 1)
        for i in range(4):
            k(f"""v_lshlrev_b32 v{t+2*i}, 16, v{X+4*s+i}
            v_and_b32 v{t+2*i+1}, s38, v{X+4*s+i}
            v_lshlrev_b32 v{t+8+2*i}, 16, v{Y+4*s+i}
            v_and_b32 v{t+9+2*i}, s38, v{Y+4*s+i}""")
        for i in range(4): k(f"v_pk_fma_f32 v[{64+2*i}:{65+2*i}], v[{t+2*i}:{t+2*i+1}], v[24:25], v[26:27]")
        for i in range(4): k(f"v_pk_fma_f32 v[{64+2*i}:{65+2*i}], v[{64+2*i}:{65+2*i}], v[{t+8+2*i}:{t+9+2*i}], v[{t+2*i}:{t+2*i+1}]")
        for i in range(4): k(f"v_pk_fma_f32 v[{64+2*i}:{65+2*i}], v[{64+2*i}:{65+2*i}], v[28:29], v[30:31]")
        for i in range(4): k(f"v_cvt_pk_bf16_f32 v{X+4*s+i}, v{64+2*i}, v{65+2*i}")
        k(f"ds_write_b128 v6, v[{X+4*s}:{X+4*s+3}] offset:{1024*s}")
        if 2 <= s < 8: wl(s+6)
    k.stamp()
    k(f"s_waitcnt vmcnt({vm.n_after('ex')})")
    for e in range(2):
        for i in range(4):
            x = 200+8*e+i; y = 204+8*e+i
            k(f"""v_dot2_f32_bf16 v32, v{x}, v216, v18
            v_dot2_f32_bf16 v33, v{x}, v217, v18
            v_and_b32 v34, 0xffff, v{y}
            v_and_b32 v35, s38, v{y}
            v_lshlrev_b32 v36, 16, v{x}
            v_and_b32 v37, s38, v{x}
            v_cvt_pk_bf16_f32 v32, v32, v33
            v_lshlrev_b32 v33, 16, v32
            v_and_b32 v32, s38, v32
            v_mul_f32 v33, v33, v19
            v_mul_f32 v32, v32, v19
            v_cvt_pk_bf16_f32 v32, v33, v32
            v_dot2_f32_bf16 v34, v32, v34, 0
            v_dot2_f32_bf16 v35, v32, v35, 0
            s_nop 2
            v_cvt_pk_bf16_f32 v34, v34, v35
            v_dot2_f32_bf16 v36, v34, v216, v36
            v_dot2_f32_bf16 v37, v34, v217, v37
            s_nop 2
            v_cvt_pk_bf16_f32 v{220+4*e+i}, v36, v37""")
    k(f"""s_add_u32 s36, s35, {X3F}
    buffer_store_dwordx4 v[220:223], v3, s[28:31], s36 offen
    s_cmp_ge_u32 s25, 6
    s_cbranch_scc1 L_k5_skip2
    s_add_u32 s36, s36, 8192
    buffer_store_dwordx4 v[224:227], v3, s[28:31], s36 offen
    L_k5_skip2:
    """)
    import k2
    old = k2.HF_OFF; k2.HF_OFF = 0
    k2.gemm_and_store(k, "k5", 1)
    k2.HF_OFF = old
    k.ts_end()
    k("L_k5_done:")
    return k
```

```python
TS_OFF = 48 << 20

class Kernel:
    def __init__(self, name, grid, nthreads, lds=0, vgpr=256, sgpr=96, agpr=0, ts_idx=None):
        self.name = name; self.grid = grid; self.nthreads = nthreads; self.lds = lds
        self.vgpr = vgpr; self.sgpr = sgpr; self.agpr = agpr
        self.lines = []; self.ts_idx = ts_idx; self._lab = 0; self.nstamp = 0
    def __call__(self, s):
        for l in s.split("\n"):
            l = l.strip()
            if l == ";S93": l = "s_mov_b32 s93, s22" if self.ts_idx is not None else ""
            if l == ";STAMP": self.stamp(); continue
            if l: self.lines.append("    " + l if not l.endswith(":") else l)
    def label(self, base="L"):
        self._lab += 1
        return f"{base}_{self.name}_{self._lab}"
    def srd(self, d, base, nbytes):
        self(f"s_mov_b32 s{d}, s{base}\ns_mov_b32 s{d+1}, s{base+1}\ns_mov_b32 s{d+2}, {nbytes}\ns_mov_b32 s{d+3}, 0x20000")
    def srd_off(self, d, base, off, nbytes):
        self(f"s_add_u32 s{d}, s{base}, {off}\ns_addc_u32 s{d+1}, s{base+1}, 0\ns_mov_b32 s{d+2}, {nbytes}\ns_mov_b32 s{d+3}, 0x20000")
    def ts_start(self):
        if self.ts_idx is None: return
        self("s_memrealtime s[90:91]\ns_memtime s[88:89]")
    def stamp(self):
        if self.ts_idx is None: return
        i = self.nstamp; self.nstamp += 1
        assert i < 8
        self(f"s_memrealtime s[{72+2*i}:{73+2*i}]")
    def ts_end(self):
        if self.ts_idx is None: return
        off = TS_OFF + self.ts_idx * 65536 * 8
        self(f"""s_waitcnt vmcnt(0) lgkmcnt(0)
        s_memrealtime s[94:95]
        s_memtime s[100:101]
        s_load_dwordx2 s[96:97], s[0:1], 88
        s_waitcnt lgkmcnt(0)
        s_add_u32 s96, s96, {off}
        s_addc_u32 s97, s97, 0
        s_mov_b32 s98, 0x40000
        s_mov_b32 s99, 0x20000
        s_mov_b64 exec, 1
        v_mov_b32 v2, s90
        s_sub_u32 s100, s100, s88
        v_mov_b32 v3, s100
        v_mov_b32 v4, s94
        v_mov_b32 v5, 0
        s_lshl_b32 s92, s2, 8
        s_lshl_b32 s93, s93, 4
        s_add_u32 s92, s92, s93
        v_mov_b32 v1, s92
        buffer_store_dwordx4 v[2:5], v1, s[96:99], 0 offen""")
        if self.nstamp:
            self("s_add_u32 s96, s96, 0x400000\ns_addc_u32 s97, s97, 0\ns_mov_b32 s98, 0x80000\nv_lshlrev_b32 v1, 1, v1\ns_nop 1")
            for i in range(8): self(f"v_mov_b32 v{2+i}, s{72+2*min(i, self.nstamp-1)}")
            self("buffer_store_dwordx4 v[2:5], v1, s[96:99], 0 offen\nbuffer_store_dwordx4 v[6:9], v1, s[96:99], 0 offen offset:16")
    def wave_id_to_s93(self):
        self("v_lshrrev_b32 v1, 6, v0\ns_nop 0\nv_readfirstlane_b32 s93, v1")
    def text(self):
        t = f".globl {self.name}\n.p2align 8\n.type {self.name},@function\n{self.name}:\n"
        t += "\n".join(self.lines) + "\n    s_endpgm\n"
        return t
    def desc(self):
        acc = (self.vgpr + 3)//4*4
        nfv = acc + self.agpr if self.agpr else self.vgpr
        sg = 102 if self.ts_idx is not None else self.sgpr
        return f""".p2align 6
.amdhsa_kernel {self.name}
  .amdhsa_next_free_vgpr {nfv}
  .amdhsa_next_free_sgpr {sg}
  .amdhsa_accum_offset {acc}
  .amdhsa_group_segment_fixed_size 0
  .amdhsa_kernarg_size 96
  .amdhsa_user_sgpr_count 2
  .amdhsa_user_sgpr_kernarg_segment_ptr 1
  .amdhsa_system_sgpr_workgroup_id_x 1
.end_amdhsa_kernel
"""

def build(launch_kernels, header=""):
    out = header
    for k in launch_kernels:
        out += f"; @launch kernel={k.name} grid=({k.grid},1,1) block=({k.nthreads},1,1) lds={k.lds}\n"
    out += '.amdgcn_target "amdgcn-amd-amdhsa--gfx950"\n.text\n'
    seen = []
    for k in launch_kernels:
        if k not in seen: seen.append(k)
    for k in seen: out += k.text()
    out += "L_code_end:\n"
    out += '.section .rodata,"a"\n'
    for k in seen: out += k.desc()
    return out
```

```python
from asmgen import *
from layout import *

def gen_k0(ts=None):
    k = Kernel("k0_kernel", 256, 512, lds=16384, vgpr=96, sgpr=72, ts_idx=ts)
    k.ts_start()
    k("""s_cmp_ge_u32 s2, 256
    s_cbranch_scc1 L_k0_done
    s_load_dwordx8 s[4:11], s[0:1], 0
    s_load_dwordx2 s[12:13], s[0:1], 32
    s_load_dwordx4 s[16:19], s[0:1], 56
    s_load_dwordx2 s[20:21], s[0:1], 88
    v_lshrrev_b32 v1, 6, v0
    v_and_b32 v2, 63, v0
    v_readfirstlane_b32 s22, v1
    s_mov_b32 s23, 0x24924925
    s_mul_hi_u32 s48, s2, s23
    s_mul_i32 s49, s48, 7
    s_sub_u32 s49, s2, s49
    ;S93
    """)
    k(f"""v_lshrrev_b32 v3, 3, v0
    v_and_b32 v4, 7, v0
    s_lshl_b32 s50, s48, 6
    v_add_u32 v5, s50, v3
    s_movk_i32 s51, 896
    v_mul_lo_u32 v5, v5, s51
    s_lshl_b32 s52, s49, 7
    v_lshl_add_u32 v6, v4, 4, s52
    v_add_u32 v5, v5, v6
    v_subrev_u32 v7, 896, v5
    v_subrev_u32 v8, 1792, v5
    v_subrev_u32 v9, 2688, v5
    v_lshlrev_b32 v6, 2, v6
    v_mov_b32 v63, 0x40000000
    """)
    k(f"""s_lshl_b32 s53, s2, 3
    s_add_u32 s53, s53, s22
    s_mul_i32 s54, s53, 896
    v_lshlrev_b32 v60, 4, v2
    v_cmp_gt_u32 vcc, 56, v2
    v_add_u32 v61, s54, v60
    v_and_b32 v64, 15, v2
    v_lshrrev_b32 v65, 4, v2
    v_cndmask_b32 v61, v63, v61, vcc
    """)
    k(f"""s_mul_i32 s55, s2, 7
    s_add_u32 s55, s55, s22
    s_cmp_ge_u32 s55, 1344
    s_cbranch_scc1 L_k0_wo
    s_mov_b32 s54, 0x12492493
    s_mul_hi_u32 s56, s55, s54
    s_mul_i32 s57, s56, 14
    s_sub_u32 s57, s55, s57
    s_mov_b32 s54, 0x15555556
    s_mul_hi_u32 s58, s56, s54
    s_mul_i32 s59, s58, 12
    s_sub_u32 s59, s56, s59
    s_mov_b32 s54, 0x55555556
    s_mul_hi_u32 s60, s59, s54
    s_mul_i32 s61, s60, 3
    s_sub_u32 s61, s59, s61
    s_and_b32 s62, s60, 1
    s_lshr_b32 s63, s60, 1
    s_lshl_b32 s64, s58, 1
    s_add_u32 s63, s63, s64
    s_cmp_eq_u32 s61, 2
    s_cselect_b32 s64, 2, s62
    s_cselect_b32 s62, s62, s61
    s_mul_i32 s64, s64, 448
    s_mul_i32 s63, s63, 28
    s_add_u32 s64, s64, s63
    s_lshl_b32 s62, s62, 4
    v_add_u32 v64, s62, v64
    v_cmp_gt_u32 vcc, 28, v64
    v_add_u32 v64, s64, v64
    v_lshlrev_b32 v64, 1, v64
    s_lshl_b32 s57, s57, 5
    v_lshl_add_u32 v65, v65, 2, s57
    s_movk_i32 s54, 2688
    v_mul_lo_u32 v65, v65, s54
    v_add_u32 v64, v64, v65
    v_cndmask_b32 v64, v63, v64, vcc
    v_mov_b32 v66, v64
    s_lshl_b32 s55, s55, 10
    s_add_u32 s55, s55, {WQF}
    s_waitcnt lgkmcnt(0)
    """)
    k.srd(44, 16, 448*1344*2)
    k(f"""s_branch L_k0_go
    L_k0_wo:
    s_sub_u32 s55, s55, 1344
    s_lshr_b32 s56, s55, 4
    s_and_b32 s57, s55, 15
    s_lshl_b32 s56, s56, 4
    v_add_u32 v64, s56, v64
    v_lshlrev_b32 v64, 1, v64
    s_mul_i32 s57, s57, 28
    v_cmp_gt_u32 vcc, 3, v65
    v_lshl_add_u32 v65, v65, 2, s57
    s_movk_i32 s54, 896
    v_mul_lo_u32 v65, v65, s54
    v_add_u32 v64, v64, v65
    v_cndmask_b32 v66, v63, v64, vcc
    s_lshl_b32 s55, s55, 10
    s_add_u32 s55, s55, {WOF}
    s_waitcnt lgkmcnt(0)
    """)
    k.srd(44, 18, 448*448*2)
    k("L_k0_go:\n;STAMP")
    k.srd(24, 4, NB); k.srd(28, 6, NB); k.srd(32, 8, NB); k.srd(36, 10, 448*8); k.srd(40, 20, WS_BYTES)
    k("""buffer_load_dwordx4 v[12:15], v9, s[28:31], 0 offen
    buffer_load_dwordx4 v[16:19], v8, s[28:31], 0 offen
    buffer_load_dwordx4 v[20:23], v7, s[28:31], 0 offen
    buffer_load_dwordx4 v[24:27], v5, s[28:31], 0 offen
    buffer_load_dwordx4 v[28:31], v5, s[32:35], 0 offen
    buffer_load_dwordx4 v[32:35], v5, s[24:27], 0 offen
    buffer_load_dwordx4 v[36:39], v6, s[36:39], 0 offen
    buffer_load_dwordx4 v[40:43], v6, s[36:39], 0 offen offset:16
    buffer_load_dwordx4 v[44:47], v6, s[36:39], 0 offen offset:32
    buffer_load_dwordx4 v[48:51], v6, s[36:39], 0 offen offset:48
    buffer_load_dwordx4 v[52:55], v61, s[24:27], 0 offen
    s_cmp_eq_u32 s22, 7
    s_cbranch_scc1 L_k0_pf
    s_mov_b32 s56, s54
    s_lshl_b32 s57, s54, 1
    s_add_u32 s58, s57, s54
    s_lshl_b32 s59, s54, 4
    s_add_u32 s60, s59, s56
    s_add_u32 s61, s59, s57
    s_add_u32 s62, s59, s58
    buffer_load_ushort v68, v64, s[44:47], 0 offen
    buffer_load_ushort v72, v64, s[44:47], s56 offen
    buffer_load_ushort v69, v64, s[44:47], s57 offen
    buffer_load_ushort v73, v64, s[44:47], s58 offen
    buffer_load_ushort v70, v66, s[44:47], s59 offen
    buffer_load_ushort v74, v66, s[44:47], s60 offen
    buffer_load_ushort v71, v66, s[44:47], s61 offen
    buffer_load_ushort v75, v66, s[44:47], s62 offen
    s_branch L_k0_A
    L_k0_pf:""")
    k.srd(44, 12, NB)
    k("s_mul_i32 s56, s2, 7168\ns_add_u32 s57, s56, 4096")
    for i in range(7):
        k(f"buffer_load_dwordx4 v[68:71], v60, s[44:47], s{56+i//4} offen offset:{1024*(i%4)}")
    k("buffer_load_dword v72, v60, s[44:47], s56 offen")
    k("""L_k0_A:
    s_mov_b32 s56, 0xffff0000
    s_mov_b32 s57, 0x01000504
    s_mov_b32 s58, 0x03020706
    v_mov_b32 v62, 0x3f803f80
    v_lshlrev_b32 v10, 7, v3
    v_lshl_add_u32 v10, v4, 4, v10
    ;STAMP
    s_waitcnt vmcnt(9)
    ;STAMP
    ds_write_b128 v10, v[32:35] offset:8192
    """)
    for p in range(4):
        k(f"""v_perm_b32 v76, v{24+p}, v{20+p}, s57
        v_perm_b32 v77, v{24+p}, v{20+p}, s58
        v_perm_b32 v78, v{16+p}, v{12+p}, s57
        v_perm_b32 v79, v{16+p}, v{12+p}, s58
        v_dot2_f32_bf16 v76, v76, v{36+4*p}, 0
        v_dot2_f32_bf16 v77, v77, v{38+4*p}, 0
        v_lshlrev_b32 v80, 16, v{28+p}
        v_and_b32 v81, s56, v{28+p}
        v_dot2_f32_bf16 v76, v78, v{37+4*p}, v76
        v_dot2_f32_bf16 v77, v79, v{39+4*p}, v77
        s_nop 2
        v_mul_f32 v76, v76, v80
        v_mul_f32 v77, v77, v81
        v_cvt_pk_bf16_f32 v{56+p}, v76, v77""")
    k(f"""ds_write_b128 v10, v[56:59]
    s_lshr_b32 s59, s22, 1
    s_and_b32 s60, s22, 1
    s_lshl_b32 s60, s60, 2
    v_lshrrev_b32 v76, 4, v2
    v_add_u32 v76, s60, v76
    v_and_b32 v77, 15, v2
    v_lshrrev_b32 v78, 2, v77
    v_lshl_add_u32 v78, v76, 3, v78
    v_lshlrev_b32 v78, 7, v78
    v_and_b32 v79, 3, v77
    v_lshl_add_u32 v78, v79, 3, v78
    s_lshl_b32 s61, s59, 5
    v_add_u32 v78, s61, v78
    s_lshl_b32 s61, s49, 6
    s_lshl_b32 s62, s59, 4
    s_add_u32 s61, s61, s62
    v_add_u32 v77, s61, v77
    s_movk_i32 s63, {TP}
    v_mul_lo_u32 v77, v77, s63
    v_lshl_add_u32 v77, v76, 4, v77
    s_cmp_ge_u32 s2, 224
    s_cselect_b32 s62, 0x40000000, 0
    v_or_b32 v77, s62, v77
    s_lshl_b32 s61, s48, 7
    s_add_u32 s62, s61, {X0T}
    s_add_u32 s61, s61, {KVT}
    v_mov_b32 v82, 0
    v_mov_b32 v83, 0
    s_waitcnt vmcnt(8) lgkmcnt(0)
    s_barrier
    ds_read_b64_tr_b16 v[84:85], v78
    ds_read_b64_tr_b16 v[86:87], v78 offset:512
    ds_read_b64_tr_b16 v[88:89], v78 offset:8192
    ds_read_b64_tr_b16 v[90:91], v78 offset:{8192+512}
    """)
    for i in range(4):
        k(f"v_dot2_f32_bf16 v82, v{52+i}, v62, v82\nv_dot2_f32_bf16 v83, v{52+i}, v{52+i}, v83")
    k("""s_waitcnt lgkmcnt(0)
    ;STAMP
    buffer_store_dwordx4 v[84:87], v77, s[40:43], s61 offen
    buffer_store_dwordx4 v[88:91], v77, s[40:43], s62 offen""")
    for sh in ["row_shr:1", "row_shr:2", "row_shr:4", "row_shr:8"]:
        k(f"s_nop 1\nv_add_f32_dpp v82, v82, v82 {sh} row_mask:0xf bank_mask:0xf bound_ctrl:0\nv_add_f32_dpp v83, v83, v83 {sh} row_mask:0xf bank_mask:0xf bound_ctrl:0")
    k("""s_nop 1
    v_add_f32_dpp v82, v82, v82 row_bcast:15 row_mask:0xa bank_mask:0xf
    v_add_f32_dpp v83, v83, v83 row_bcast:15 row_mask:0xa bank_mask:0xf
    s_nop 1
    v_add_f32_dpp v82, v82, v82 row_bcast:31 row_mask:0xc bank_mask:0xf
    v_add_f32_dpp v83, v83, v83 row_bcast:31 row_mask:0xc bank_mask:0xf
    """)
    k(f"""v_mul_f32 v82, 0x3b124925, v82
    v_mul_f32 v83, 0x3b124925, v83
    v_fma_f32 v83, -v82, v82, v83
    v_max_f32 v83, 0, v83
    v_add_f32 v83, 0x3727c5ac, v83
    v_rsq_f32 v83, v83
    v_cmp_eq_u32 vcc, 63, v2
    s_lshl_b32 s54, s53, 2
    s_add_u32 s54, s54, {ST0}
    s_add_u32 s56, s54, 8192
    v_mul_f32 v82, v82, v83
    v_cndmask_b32 v61, v63, 0, vcc
    v_sub_f32 v82, 0, v82
    buffer_store_dword v83, v61, s[40:43], s54 offen
    buffer_store_dword v82, v61, s[40:43], s56 offen
    s_cmp_eq_u32 s22, 7
    s_cbranch_scc1 L_k0_end
    s_waitcnt vmcnt(4)
    v_lshl_or_b32 v68, v72, 16, v68
    v_lshl_or_b32 v69, v73, 16, v69
    v_lshl_or_b32 v70, v74, 16, v70
    v_lshl_or_b32 v71, v75, 16, v71
    buffer_store_dwordx4 v[68:71], v60, s[40:43], s55 offen
    L_k0_end:
    """)
    k.ts_end()
    k("L_k0_done:")
    return k
```

```python
from asmgen import *
from layout import *
from k2 import xreduce
CS = 4160; GOFF = 4608; CHS = GOFF + 8*CS
EXO = 2*CHS
N0 = 20

def gen_k1(ts=None):
    k = Kernel("k1_kernel", 248, 256, lds=EXO+16384, vgpr=136, sgpr=64, agpr=256, ts_idx=ts)
    k.ts_start()
    k(f"""s_cmp_ge_u32 s2, 248
    s_cbranch_scc1 L_k1_done
    s_load_dwordx4 s[4:7], s[0:1], 32
    s_load_dwordx2 s[8:9], s[0:1], 88
    v_lshrrev_b32 v1, 6, v0
    v_and_b32 v2, 63, v0
    v_readfirstlane_b32 s22, v1
    s_lshl_b32 s10, s2, 2
    s_lshl_b32 s11, s2, 13
    v_lshlrev_b32 v3, 4, v0
    v_sub_u32 v3, 4064, v3
    v_add_u32 v3, s11, v3
    v_add_u32 v27, 16, v3
    v_lshlrev_b32 v4, 4, v2
    ;S93
    s_lshr_b32 s23, s22, 1
    s_and_b32 s33, s22, 1
    s_waitcnt lgkmcnt(0)
    ;STAMP
    """)
    k.srd(24, 4, NB); k.srd(28, 8, WS_BYTES)
    k("""s_cmp_ge_u32 s2, 224
    s_cbranch_scc1 L_k1_pf
    s_load_dword s34, s[6:7], s10""")
    HX = 104
    k(f"""buffer_load_dwordx4 v[{HX}:{HX+3}], v3, s[24:27], 0 offen
    buffer_load_dwordx4 v[{HX+4}:{HX+7}], v27, s[24:27], 0 offen
    s_movk_i32 s35, 4096
    buffer_load_dwordx4 v[{HX+8}:{HX+11}], v3, s[24:27], s35 offen
    buffer_load_dwordx4 v[{HX+12}:{HX+15}], v27, s[24:27], s35 offen
    s_mul_i32 s36, s23, {CHS}
    s_lshl_b32 s37, s33, 11
    s_add_u32 s38, s36, s37
    s_add_u32 s38, s38, 512
    s_mov_b32 m0, s38
    s_lshl_b32 s39, s2, 1
    s_add_u32 s39, s39, s23
    s_mul_i32 s39, s39, {TP}
    s_add_u32 s39, s39, s37
    s_add_u32 s44, s39, {KVT}
    buffer_load_dwordx4 v4, s[28:31], s44 offen lds
    buffer_load_dwordx4 v4, s[28:31], s44 offen offset:1024 lds
    v_and_b32 v5, 15, v2
    v_lshrrev_b32 v6, 4, v2
    v_lshlrev_b32 v7, 5, v5
    v_lshl_add_u32 v7, v6, 3, v7
    v_lshlrev_b32 v8, 1, v7
    s_add_u32 s45, s39, {X0T}
    s_lshl_b32 s46, s33, 12
    s_add_u32 s46, s46, {ST0}
    s_add_u32 s47, s46, 8192
    """)
    XE = 64; RE = 72; ME = 88
    for t in range(4):
        k(f"""buffer_load_dwordx2 v[{XE+2*t}:{XE+2*t+1}], v7, s[28:31], s45 offen offset:{512*t}
        buffer_load_dwordx4 v[{RE+4*t}:{RE+4*t+3}], v8, s[28:31], s46 offen offset:{1024*t}
        buffer_load_dwordx4 v[{ME+4*t}:{ME+4*t+3}], v8, s[28:31], s47 offen offset:{1024*t}""")
    k(f"""v_mov_b32 v120, 0
    v_mov_b32 v121, 0
    v_mov_b32 v122, 0
    v_mov_b32 v123, 0
    s_mov_b32 s45, {CHS}
    v_bfe_u32 v9, v0, 5, 1
    v_mul_lo_u32 v9, v9, s45
    v_and_b32 v10, 31, v0
    v_lshl_add_u32 v9, v10, 4, v9
    ds_write_b128 v9, v[120:123]
    v_bfe_u32 v9, v0, 3, 1
    v_mul_lo_u32 v9, v9, s45
    v_and_b32 v10, 7, v0
    s_movk_i32 s45, {CS}
    v_mul_lo_u32 v10, v10, s45
    v_add_u32 v9, v9, v10
    ds_write_b128 v9, v[120:123] offset:{GOFF+258*16}
    v_lshlrev_b32 v9, 4, v0
    v_add_u32 v16, {CHS}, v9
    v_cmp_eq_u32 vcc, 255, v0
    v_mov_b32 v11, 0xffff
    """)
    k(f"""v_and_b32 v10, 7, v5
    v_sub_u32 v10, 7, v10
    v_mul_lo_u32 v10, v10, s45
    v_lshrrev_b32 v12, 3, v5
    v_sub_u32 v12, v6, v12
    v_lshl_add_u32 v10, v12, 4, v10
    s_add_u32 s45, s36, {GOFF+4080-64*63}
    v_add_u32 v10, s45, v10
    v_lshlrev_b32 v12, 5, v5
    v_lshl_add_u32 v12, v6, 4, v12
    s_add_u32 s45, s36, {480-64*7}
    v_add_u32 v12, s45, v12
    ;STAMP
    s_waitcnt vmcnt(14)
    ;STAMP""")
    for ch in range(2):
        X = HX + 8*ch
        for w in range(4): k(f"v_cndmask_b32 v{X+w}, v{X+w}, v120, vcc")
        for c in range(8):
            o = 124 + 4*(c & 1)
            for q in range(4):
                e1 = 15 - c - 2*q
                if e1 & 1: k(f"v_alignbit_b32 v{o+q}, v{X+(e1-1)//2}, v{X+(e1-1)//2}, 16")
                else: k(f"v_bfi_b32 v{o+q}, v11, v{X+e1//2}, v{X+e1//2-1}")
            k(f"ds_write_b128 v{9 if ch == 0 else 16}, v[{o}:{o+3}] offset:{GOFF + c*CS + 32}")
    k(f""";STAMP
    s_waitcnt vmcnt(12) lgkmcnt(0)
    s_barrier
    ;STAMP
    s_lshr_b32 s49, s2, 3
    s_lshl_b32 s50, s49, 16
    s_lshl_b32 s51, s22, 14
    s_add_u32 s50, s50, s51
    s_add_u32 s51, s50, {WQF}
    s_add_u32 s50, s50, {WOF - 21*65536}
    s_cmp_ge_u32 s49, 21
    s_cselect_b32 s50, s50, s51
    s_add_u32 s51, s50, 8192
    v_lshlrev_b32 v13, 7, v2
    buffer_load_dword v132, v13, s[28:31], s50 offen
    buffer_load_dword v133, v13, s[28:31], s51 offen
    s_cmp_eq_u32 s33, 1
    s_cbranch_scc1 L_k1_w1""")
    ACC = 32
    HR = 16
    def conv(n_lo, n_hi):
        q = []
        loaded = set(); started = set()
        def issue(n):
            k(f"ds_read_b128 v[{HR+4*(n%4)}:{HR+4*(n%4)+3}], v10 offset:{64*(63-n)}"); q.append(("H", n))
            for p in range(7, -1, -1):
                d = 8*p - n
                if d >= -7 and d not in loaded:
                    loaded.add(d)
                    k(f"ds_read_b128 a[{4*(d+7)}:{4*(d+7)+3}], v12 offset:{64*(d+7)}"); q.append(("F", d))
        def wait(tags):
            last = max(i for i, t in enumerate(q) if t in tags) if any(t in tags for t in q) else -1
            if last >= 0:
                n_out = len(q) - 1 - last
                k(f"s_waitcnt lgkmcnt({min(15, n_out)})")
                del q[:last+1 if n_out <= 15 else len(q)-15]
        D = 2
        for n in range(n_lo, min(n_lo+D, n_hi)): issue(n)
        for n in range(n_lo, n_hi):
            if n + D < n_hi: issue(n+D)
            ps = [p for p in range(7, -1, -1) if 8*p - n >= -7]
            for p in ps:
                d = 8*p - n
                wait({("H", n), ("F", d)})
                c = f"v[{ACC+4*p}:{ACC+4*p+3}]" if p in started else "0"
                started.add(p)
                k(f"v_mfma_f32_16x16x32_bf16 v[{ACC+4*p}:{ACC+4*p+3}], v[{HR+4*(n%4)}:{HR+4*(n%4)+3}], a[{4*(d+7)}:{4*(d+7)+3}], {c}")
        return started
    conv(0, N0)
    k(f"""s_lshl_b32 s45, s22, 12
    s_add_u32 s45, s45, {EXO}
    v_add_u32 v13, s45, v4
    v_xor_b32 v14, 0x1000, v13
    s_nop 4""")
    for t in range(4): k(f"ds_write_b128 v13, v[{ACC+16+4*t}:{ACC+19+4*t}] offset:{1024*t}")
    k("s_branch L_k1_join\nL_k1_w1:")
    for r in range(ACC, ACC+8): k(f"v_mov_b32 v{r}, 0")
    conv(N0, 64)
    k(f"""s_lshl_b32 s45, s22, 12
    s_add_u32 s45, s45, {EXO}
    v_add_u32 v13, s45, v4
    v_xor_b32 v14, 0x1000, v13
    s_nop 4""")
    for t in range(4): k(f"ds_write_b128 v13, v[{ACC+4*t}:{ACC+3+4*t}] offset:{1024*t}")
    k("s_nop 1")
    for r in range(16): k(f"v_mov_b32 v{ACC+r}, v{ACC+16+r}")
    k(f"""L_k1_join:
    ;STAMP
    s_add_u32 s45, s36, s37
    s_add_u32 s45, s45, 512
    v_add_u32 v15, s45, v7
    s_lshl_b32 s45, s23, 4
    s_lshr_b32 s45, s34, s45
    s_lshl_b32 s45, s45, 16
    s_mov_b32 s46, 0xffff0000
    s_add_u32 s47, s39, {YT}
    s_add_u32 s48, s39, {X1T}
    s_waitcnt vmcnt(2) lgkmcnt(0)
    s_barrier""")
    for t in range(4): k(f"ds_read_b128 v[{ACC+16+4*t}:{ACC+19+4*t}], v14 offset:{1024*t}\nds_read_b64 v[{16+2*t}:{17+2*t}], v15 offset:{512*t}")
    for t in range(4):
        k(f"s_waitcnt lgkmcnt({2*(3-t)})")
        a = ACC + 4*t
        for i in range(4): k(f"v_add_f32 v{a+i}, v{a+i}, v{a+16+i}")
        for pr in range(2):
            kv = 16+2*t+pr; x = XE+2*t+pr
            k(f"""v_lshlrev_b32 v24, 16, v{kv}
            v_and_b32 v25, s46, v{kv}
            v_lshlrev_b32 v26, 16, v{x}
            v_and_b32 v27, s46, v{x}
            v_fma_f32 v{a+2*pr}, v24, s45, v{a+2*pr}
            v_fma_f32 v{a+2*pr+1}, v25, s45, v{a+2*pr+1}
            v_fma_f32 v28, v26, v{RE+4*t+2*pr}, v{ME+4*t+2*pr}
            v_fma_f32 v29, v27, v{RE+4*t+2*pr+1}, v{ME+4*t+2*pr+1}
            v_fma_f32 v28, v28, v{a+2*pr}, v26
            v_fma_f32 v29, v29, v{a+2*pr+1}, v27
            v_cvt_pk_bf16_f32 v{120+4*(t&1)+pr}, v{a+2*pr}, v{a+2*pr+1}
            v_cvt_pk_bf16_f32 v{122+4*(t&1)+pr}, v28, v29""")
        o = 120+4*(t&1)
        k(f"""buffer_store_dwordx2 v[{o}:{o+1}], v7, s[28:31], s47 offen offset:{512*t}
        buffer_store_dwordx2 v[{o+2}:{o+3}], v7, s[28:31], s48 offen offset:{512*t}""")
    k("s_branch L_k1_end")
    k(f"""L_k1_pf:
    s_sub_u32 s36, s2, 224
    s_lshl_b32 s36, s36, 2
    s_add_u32 s36, s36, s22
    s_mul_i32 s37, s36, {14*1024}
    s_add_u32 s37, s37, {WQF}""")
    for s_ in range(14):
        if s_ and s_ % 4 == 0: k("s_add_u32 s37, s37, 4096")
        k(f"buffer_load_dwordx4 v[{64+4*s_}:{67+4*s_}], v4, s[28:31], s37 offen offset:{1024*(s_%4)}")
    k("v_mov_b32 v23, 0x3f803f80\ns_waitcnt vmcnt(0)\nv_mov_b32 v8, 0\nv_mov_b32 v9, 0")
    for i in range(56): k(f"v_dot2_f32_bf16 v{8+(i&1)}, v{64+i}, v23, v{8+(i&1)}")
    k("s_nop 2\nv_add_f32 v8, v8, v9")
    xreduce(k, [8], [9])
    k(f"""v_and_b32 v5, 15, v2
    v_lshlrev_b32 v5, 2, v5
    s_lshl_b32 s36, s36, 6
    s_add_u32 s36, s36, {CSO}
    buffer_store_dword v8, v5, s[28:31], s36 offen
    L_k1_end:""")
    k.ts_end()
    k("L_k1_done:")
    return k
```

```python
from asmgen import *
from layout import *
XT_OFF = 0; YT_OFF = 57344
ACC = 8; AF = 56; PD = 3; PD2 = 4
NS = 7

class VM:
    def __init__(self): self.ops = []
    def issue(self, tag, n=1): self.ops += [tag]*n
    def n_after(self, tag):
        i = max(j for j, t in enumerate(self.ops) if t == tag)
        return min(63, len(self.ops) - 1 - i)

def xreduce(k, regs, tmp):
    for op in ("v_permlane16_swap_b32", "v_permlane32_swap_b32"):
        for r, t in zip(regs, tmp): k(f"v_mov_b32 v{t}, v{r}")
        k("s_nop 1")
        for r, t in zip(regs, tmp): k(f"{op} v{r}, v{t}")
        k("s_nop 1")
        for r, t in zip(regs, tmp): k(f"v_add_f32 v{r}, v{r}, v{t}")

def ln_stats(k, s1, s2):
    k(f"""v_mul_f32 v{s1}, 0x3b124925, v{s1}
    v_mul_f32 v{s2}, 0x3b124925, v{s2}
    v_fma_f32 v{s2}, -v{s1}, v{s1}, v{s2}
    v_max_f32 v{s2}, 0, v{s2}
    v_add_f32 v{s2}, 0x3727c5ac, v{s2}
    v_rsq_f32 v{s2}, v{s2}
    s_nop 0""")

def ids(k, L):
    k(f"""s_cmp_ge_u32 s2, 256
    s_cbranch_scc1 L_{L}_done
    s_load_dwordx2 s[8:9], s[0:1], 88
    v_lshrrev_b32 v1, 6, v0
    v_and_b32 v2, 63, v0
    v_readfirstlane_b32 s22, v1
    s_and_b32 s24, s2, 7
    s_lshl_b32 s24, s24, 2
    s_lshr_b32 s25, s2, 6
    s_add_u32 s24, s24, s25
    s_bfe_u32 s25, s2, 0x30003
    v_lshlrev_b32 v3, 4, v2
    ;S93
    s_and_b32 s23, s22, 3
    s_lshr_b32 s21, s22, 2""")
def w_setup(k):
    k(f"""s_mul_i32 s40, s25, {12*14*1024}
    s_mul_i32 s41, s23, {3*14*1024}
    s_add_u32 s40, s40, s41
    s_mul_i32 s41, s21, {NS*1024}
    s_add_u32 s40, s40, s41
    s_add_u32 s40, s40, {WQF}
    s_add_u32 s41, s40, {14*1024}
    s_add_u32 s42, s40, {28*1024}""")
def w_load(k, vm, s):
    import os
    if os.environ.get("NOW"):
        vm.issue(("w", s), 0); vm.ops.append(("w", s)); k("buffer_load_dword v1, v3, s[28:31], s40 offen"); return
    if s and s % 4 == 0:
        k("s_add_u32 s40, s40, 4096\ns_add_u32 s41, s41, 4096\ns_add_u32 s42, s42, 4096")
    for j in range(3):
        a = (s*3+j)*4
        k(f"buffer_load_dwordx4 a[{a}:{a+3}], v3, s[28:31], s{40+j} offen offset:{1024*(s%4)}")
        vm.issue(("w", s))
def cs_load(k, vm, C):
    k(f"""s_mul_i32 s43, s25, {12*64}
    s_mul_i32 s44, s23, {3*64}
    s_add_u32 s43, s43, s44
    s_add_u32 s43, s43, {CSO}
    v_lshrrev_b32 v6, 4, v2
    v_lshlrev_b32 v6, 4, v6
    v_and_b32 v7, 15, v2
    v_lshlrev_b32 v7, 2, v7
    buffer_load_dwordx4 v[{C}:{C+3}], v6, s[28:31], s43 offen
    buffer_load_dwordx4 v[{C+4}:{C+7}], v6, s[28:31], s43 offen offset:64
    buffer_load_dword v{C+8}, v7, s[28:31], s43 offen offset:128""")
    vm.issue("cs", 3)
def mfmas(k, s, fill=()):
    import os
    if os.environ.get("NOMFMA"): return
    fill = list(fill); per = (len(fill) + 7) // 8
    for mu in range(4):
        b = AF + 16*(s & 1) + 4*mu
        for j in range(3):
            a = (s*3+j)*4; c = ACC + (mu*3+j)*4
            cc = "0" if s == 0 else f"v[{c}:{c+3}]"
            if j < 2: k(f"v_mfma_f32_16x16x32_bf16 v[{c}:{c+3}], a[{a}:{a+3}], v[{b}:{b+3}], {cc}")
            else: k(f"v_mfma_f32_16x16x32_bf16 v[{c}:{c+3}], v[{b}:{b+3}], a[{a}:{a+3}], {cc}")
            for _ in range(per):
                if fill: k(fill.pop(0))
    for f_ in fill: k(f_)
def stat_fill(s, regs, S):
    o = []
    for i, r in enumerate(regs):
        c0 = "0" if s == 0 and i < 2 else f"v{S+(i&1)}"; c1 = "0" if s == 0 and i < 2 else f"v{S+2+(i&1)}"
        o += [f"v_dot2_f32_bf16 v{S+(i&1)}, v{r}, v{S+4}, {c0}", f"v_dot2_f32_bf16 v{S+2+(i&1)}, v{r}, v{r}, {c1}"]
    return o

def epilogue(k, lo, C, S, EX, T):
    PT = EX + 49152; WT = PT + 1024
    k(f"""v_add_f32 v{S}, v{S}, v{S+1}
    v_add_f32 v{S+1}, v{S+2}, v{S+3}""")
    xreduce(k, [S, S+1], [S+2, S+3])
    k(f"""s_mul_i32 s36, s22, 6144
    s_add_u32 s36, s36, {EX}
    v_add_u32 v4, s36, v3
    s_xor_b32 s37, s22, 4
    s_mul_i32 s37, s37, 6144
    s_add_u32 s37, s37, {EX}
    v_add_u32 v5, s37, v3
    v_and_b32 v6, 15, v2
    v_lshlrev_b32 v6, 4, v6
    s_lshl_b32 s36, s23, 8
    s_lshl_b32 s37, s21, 3
    s_add_u32 s36, s36, s37
    s_add_u32 s36, s36, {PT}
    v_add_u32 v6, s36, v6""")
    for i in range(6): k(f"ds_write_b128 v4, v[{ACC+24+4*i}:{ACC+27+4*i}] offset:{1024*i}")
    k(f"""ds_write_b64 v6, v[{S}:{S+1}]
    v_add_u32 v6, {PT}, v3
    s_lshl_b32 s36, s22, 9
    s_add_u32 s36, s36, {WT}
    v_lshlrev_b32 v7, 3, v2
    v_add_u32 v7, s36, v7
    s_waitcnt lgkmcnt(0)
    s_barrier
    ds_read_b128 v[{S}:{S+3}], v6""")
    for i in range(6): k(f"ds_read_b128 v[{ACC+24+4*i}:{ACC+27+4*i}], v5 offset:{1024*i}")
    k(f"""s_lshl_b32 s37, s21, 8
    s_add_u32 s36, s36, s37
    v_and_b32 v4, 15, v2
    v_lshl_add_u32 v4, v4, 3, s36
    v_lshrrev_b32 v5, 4, v2
    v_lshl_add_u32 v5, v5, 5, s36
    s_waitcnt lgkmcnt(6)
    v_add_f32 v{S}, v{S}, v{S+2}
    v_add_f32 v{S+1}, v{S+1}, v{S+3}""")
    ln_stats(k, S, S+1)
    k(f"ds_write_b64 v7, v[{S}:{S+1}]")
    for mu in range(2): k(f"ds_read_b64 v[{T+2*mu}:{T+2*mu+1}], v4 offset:{128*mu}")
    for mu in range(2):
        k(f"ds_read_b128 v[{T+8+8*mu}:{T+11+8*mu}], v5 offset:{128*mu}\nds_read_b128 v[{T+12+8*mu}:{T+15+8*mu}], v5 offset:{128*mu+16}")
    k(f"""s_lshr_b32 s40, s23, 1
    s_lshl_b32 s41, s25, 1
    s_add_u32 s40, s40, s41
    s_and_b32 s41, s23, 1
    s_lshl_b32 s42, s40, 17
    s_lshl_b32 s43, s24, 12
    s_add_u32 s42, s42, s43
    s_lshl_b32 s43, s21, 11
    s_add_u32 s42, s42, s43
    s_mul_i32 s44, s41, {KF-QF}
    s_add_u32 s44, s44, s42
    s_add_u32 s44, s44, {lo+QF}
    s_lshl_b32 s45, s41, 10
    s_add_u32 s45, s45, s42
    s_add_u32 s45, s45, {lo+VF}
    s_mul_i32 s46, s41, 16
    s_sub_u32 s46, 28, s46
    v_and_b32 v6, 15, v2
    v_cmp_eq_u32 vcc, s46, v6
    v_mov_b32 v7, 0x3f803f80
    s_waitcnt lgkmcnt(7)""")
    for i in range(24): k(f"v_add_f32 v{ACC+i}, v{ACC+i}, v{ACC+24+i}")
    k("s_waitcnt vmcnt(0) lgkmcnt(4)")
    for mu in range(2):
        c0 = ACC + (mu*3)*4; o = AF + 4*mu
        for i in range(8): k(f"v_fma_f32 v{c0+i}, -v{T+2*mu}, v{C+i}, v{c0+i}")
        for i in range(8): k(f"v_mul_f32 v{c0+i}, v{c0+i}, v{T+2*mu+1}")
        for i in range(4): k(f"v_cvt_pk_bf16_f32 v{o+i}, v{c0+2*i}, v{c0+2*i+1}")
        k(f"buffer_store_dwordx4 v[{o}:{o+3}], v3, s[28:31], s44 offen offset:{1024*mu}")
    k("s_waitcnt lgkmcnt(0)")
    o = AF + 16
    for mu in range(2):
        c0 = ACC + (mu*3+2)*4; tb = T+8+8*mu
        for i in range(4): k(f"v_fma_f32 v{c0+i}, -v{tb+2*i}, v{C+8}, v{c0+i}")
        for i in range(4): k(f"v_mul_f32 v{c0+i}, v{c0+i}, v{tb+2*i+1}")
        for i in range(2): k(f"v_cvt_pk_bf16_f32 v{o+2*mu+i}, v{c0+2*i}, v{c0+2*i+1}")
    for i in range(4): k(f"v_cndmask_b32 v{o+i}, v{o+i}, v7, vcc")
    k(f"buffer_store_dwordx4 v[{o}:{o+3}], v3, s[28:31], s45 offen")
EXSZ = 49152 + 1024 + 4096

def gen_k2(ts=None):
    EX = 65536
    k = Kernel("k2_kernel", 256, 512, lds=EX+EXSZ, vgpr=140, sgpr=64, agpr=84, ts_idx=ts)
    vm = VM()
    k.ts_start()
    ids(k, "k2")
    k(f"""v_lshrrev_b32 v4, 3, v2
    v_and_b32 v5, 7, v2
    v_and_b32 v6, 6, v4
    v_xor_b32 v5, v5, v6
    s_movk_i32 s26, {TP}
    v_mul_lo_u32 v4, v4, s26
    v_lshl_add_u32 v4, v5, 4, v4
    s_lshl_b32 s26, s24, 7
    s_mul_i32 s27, s22, {7*8*TP}
    s_add_u32 s27, s27, s26
    s_add_u32 s27, s27, {X1T}
    s_mul_i32 s32, s22, {7*1024}
    s_waitcnt lgkmcnt(0)
    ;STAMP
    """)
    k.srd(28, 8, WS_BYTES)
    for q in range(7):
        k(f"""s_mov_b32 m0, s32
        s_add_u32 s32, s32, 1024
        buffer_load_dwordx4 v4, s[28:31], s27 offen lds
        s_add_u32 s27, s27, {8*TP}""")
    k(f"""s_lshl_b32 s33, s25, 2
    s_add_u32 s33, s33, s23
    s_lshl_b32 s34, s21, 5
    s_add_u32 s33, s33, s34
    s_mul_i32 s33, s33, {8*TP}
    s_add_u32 s33, s33, s26
    s_add_u32 s33, s33, {YT}
    s_lshl_b32 s34, s22, 10
    s_add_u32 s34, s34, {YT_OFF}
    s_mov_b32 m0, s34
    s_nop 0
    buffer_load_dwordx4 v4, s[28:31], s33 offen lds
    """)
    vm.issue("dma", 8)
    w_setup(k)
    w_load(k, vm, 0)
    C = 124; S = 112
    k(f"""v_lshrrev_b32 v5, 4, v2
    v_bfe_u32 v6, v2, 2, 2
    v_lshl_add_u32 v5, v5, 2, v6
    v_lshrrev_b32 v6, 1, v5
    v_and_b32 v6, 3, v6
    v_lshlrev_b32 v5, 7, v5
    v_and_b32 v7, 3, v2
    v_lshl_add_u32 v5, v7, 3, v5
    v_lshl_add_u32 v6, v6, 5, v5
    s_lshl_b32 s35, s23, 5
    v_xor_b32 v7, s35, v6
    s_mul_i32 s36, s21, {NS*4096}
    v_add_u32 v6, s36, v6
    v_add_u32 v5, s36, v7
    s_lshl_b32 s35, s21, 6
    v_xor_b32 v120, s35, v6
    v_xor_b32 v121, 32, v120
    v_xor_b32 v122, 64, v120
    v_xor_b32 v123, 0x60, v120
    v_mov_b32 v{S+4}, 0x3f803f80
    s_lshl_b32 s36, s21, 3
    s_add_u32 s36, s36, s25
    s_lshl_b32 s37, s36, 12
    v_add_u32 v6, s37, v7
    s_lshl_b32 s37, s21, 12
    v_add_u32 v7, s37, v7
    ;STAMP
    s_waitcnt vmcnt({vm.n_after('dma')})
    s_barrier
    ;STAMP
    ds_read_b64_tr_b16 v[88:89], v6
    ds_read_b64_tr_b16 v[90:91], v6 offset:2048
    ds_read_b64_tr_b16 v[92:93], v7 offset:{YT_OFF}
    ds_read_b64_tr_b16 v[94:95], v7 offset:{YT_OFF+2048}
    """)
    OWN = 8
    for s in range(NS):
        b = OWN + 4*s
        k(f"ds_read_b64_tr_b16 v[{b}:{b+1}], v5 offset:{4096*s}\nds_read_b64_tr_b16 v[{b+2}:{b+3}], v5 offset:{4096*s+2048}")
    for s in range(1, PD2): w_load(k, vm, s)
    def rd(s):
        for mu in range(4):
            b = AF + 16*(s & 1) + 4*mu
            k(f"ds_read_b64_tr_b16 v[{b}:{b+1}], v{120+mu} offset:{4096*s}\nds_read_b64_tr_b16 v[{b+2}:{b+3}], v{120+mu} offset:{4096*s+2048}")
    k(f"""s_lshl_b32 s37, s24, 2
    s_add_u32 s37, s37, s23
    s_mul_i32 s37, s37, 14
    s_add_u32 s37, s37, s36
    s_lshl_b32 s37, s37, 10
    s_add_u32 s38, s37, {YF}
    s_add_u32 s37, s37, {X1F}
    s_cmp_ge_u32 s36, 14
    s_cselect_b32 s48, 0x40000000, 0
    v_or_b32 v7, s48, v3
    s_waitcnt lgkmcnt(14)
    buffer_store_dwordx4 v[88:91], v7, s[28:31], s37 offen
    buffer_store_dwordx4 v[92:95], v7, s[28:31], s38 offen
    """)
    vm.issue("st", 2)
    for s in range(NS):
        k(f"s_waitcnt lgkmcnt({2*(NS-1-s)})")
        for o in stat_fill(s, [OWN+4*s+i for i in range(4)], S): k(o)
    rd(0)
    k.stamp()
    for s in range(NS):
        if s + PD2 < NS: w_load(k, vm, s+PD2)
        if s + PD2 == NS: cs_load(k, vm, C)
        if s < NS-1: rd(s+1)
        k(f"s_waitcnt vmcnt({vm.n_after(('w', s))}) lgkmcnt({8 if s < NS-1 else 0})")
        mfmas(k, s)
    k.stamp()
    epilogue(k, 0, C, S, EX, 88)
    k.ts_end()
    k("L_k2_done:")
    return k
```

```python
from asmgen import *
from layout import *
VOFF = 24576
def bcast_row3(k, x, t):
    k(f"""v_mov_b32 v{t}, v{x}
    s_nop 1
    v_permlane32_swap_b32 v{x}, v{t}
    s_nop 1
    v_mov_b32 v{x}, v{t}
    s_nop 1
    v_permlane16_swap_b32 v{t}, v{x}
    s_nop 1""")
def gen_k3(layer, ts=None):
    name = "k3_kernel" if layer == 0 else "k6_kernel"
    lo = layer*L2OFF
    k = Kernel(name, 256, 512, lds=49152, vgpr=192, sgpr=72, ts_idx=ts)
    L = name[:2]
    k.ts_start()
    k(f"""s_cmp_ge_u32 s2, 256
    s_cbranch_scc1 L_{L}_done
    s_load_dwordx2 s[8:9], s[0:1], 88
    v_lshrrev_b32 v1, 6, v0
    v_and_b32 v2, 63, v0
    v_readfirstlane_b32 s22, v1
    s_and_b32 s25, s2, 7
    s_lshl_b32 s25, s25, 1
    s_lshr_b32 s24, s2, 7
    s_add_u32 s25, s25, s24
    s_bfe_u32 s24, s2, 0x40003
    v_lshlrev_b32 v3, 4, v2
    ;S93
    s_lshl_b32 s26, s24, 17
    s_lshl_b32 s27, s25, 13
    s_add_u32 s26, s26, s27
    s_mul_i32 s27, s22, 3072
    s_add_u32 s32, s26, s27
    s_add_u32 s33, s32, {lo+VF-16384}
    s_add_u32 s32, s32, {lo+KF-16384}
    s_lshl_b32 s34, s22, 10
    s_add_u32 s34, s34, s26
    s_add_u32 s34, s34, {lo+QF}
    s_add_u32 s35, s27, {VOFF}
    s_waitcnt lgkmcnt(0)
    ;STAMP
    """)
    k.srd(28, 8, WS_BYTES)
    k("""s_mov_b32 m0, s27
    buffer_load_dwordx4 v[4:7], v3, s[28:31], s34 offen
    buffer_load_dwordx4 v3, s[28:31], s32 offen lds
    buffer_load_dwordx4 v3, s[28:31], s32 offen offset:1024 lds
    buffer_load_dwordx4 v3, s[28:31], s32 offen offset:2048 lds
    s_mov_b32 m0, s35
    s_nop 0
    buffer_load_dwordx4 v3, s[28:31], s33 offen lds
    buffer_load_dwordx4 v3, s[28:31], s33 offen offset:1024 lds
    buffer_load_dwordx4 v3, s[28:31], s33 offen offset:2048 lds
    """)
    k(f"""s_lshr_b32 s36, s22, 1
    s_lshl_b32 s37, s36, 11
    v_add_u32 v8, s37, v3
    s_lshl_b32 s38, s25, 7
    s_lshl_b32 s39, s36, 5
    s_add_u32 s39, s39, s38
    s_sub_u32 s39, s39, 256
    s_lshl_b32 s40, s22, 4
    s_add_u32 s40, s40, s38
    v_and_b32 v9, 15, v2
    v_add_u32 v9, s40, v9
    v_lshrrev_b32 v10, 4, v2
    v_lshlrev_b32 v10, 2, v10
    v_add_u32 v10, s39, v10
    v_subrev_u32 v11, 255, v9
    v_max_i32 v11, 0, v11
    v_sub_u32 v11, v11, v10
    v_sub_u32 v9, v9, v10
    v_subrev_u32 v9, 256, v9
    v_mov_b32 v14, 0xf149f2ca
    s_mov_b32 s41, 0x3e8b97f6
    """)
    for i in range(8): k(f"v_cmp_ge_i32 s[{44+2*i}:{45+2*i}], {16*(i//4)+i%4}, v11")
    k(";STAMP\ns_waitcnt vmcnt(3)\ns_barrier\n;STAMP")
    KR = 96; SR = 24
    for u in range(18): k(f"ds_read_b128 v[{KR+4*u}:{KR+4*u+3}], v8 offset:{1024*u}")
    for u in range(18):
        n = 17 - u
        if n <= 15: k(f"s_waitcnt lgkmcnt({n})")
        elif u == 0: k("s_waitcnt lgkmcnt(15)")
        k(f"v_mfma_f32_16x16x32_bf16 v[{SR+4*u}:{SR+4*u+3}], v[{KR+4*u}:{KR+4*u+3}], v[4:7], 0")
    k("s_waitcnt vmcnt(0)\ns_barrier")
    for j in range(18): k(f"ds_read_b128 v[{KR+4*j}:{KR+4*j+3}], v8 offset:{VOFF+1024*j}")
    k.stamp()
    for i in range(8): k(f"v_cndmask_b32 v{SR+i}, v14, v{SR+i}, s[{44+2*i}:{45+2*i}]")
    for i in range(8): k(f"v_cmp_le_i32 s[{44+2*i}:{45+2*i}], {16*(i//4)+i%4}, v9")
    k(f"s_cmp_ge_i32 s39, -32\ns_cbranch_scc1 L_{L}_noneg")
    for u in range(2, 16, 2):
        k(f"s_cmp_ge_i32 s39, {-16*u}\ns_cbranch_scc1 L_{L}_noneg")
        for r in range(8): k(f"v_mov_b32 v{SR+4*u+r}, v14")
    k(f"L_{L}_noneg:")
    for i in range(8): k(f"v_cndmask_b32 v{SR+64+i}, v14, v{SR+64+i}, s[{44+2*i}:{45+2*i}]")
    k(f"v_max3_f32 v15, v{SR}, v{SR+1}, v14\nv_max3_f32 v16, v{SR+2}, v{SR+3}, v14")
    for i in range(4, 72, 4):
        k(f"v_max3_f32 v15, v{SR+i}, v{SR+i+1}, v15\nv_max3_f32 v16, v{SR+i+2}, v{SR+i+3}, v16")
    k("v_max_f32 v15, v15, v16")
    for op in ("v_permlane16_swap_b32", "v_permlane32_swap_b32"):
        k(f"v_mov_b32 v16, v15\ns_nop 1\n{op} v15, v16\ns_nop 1\nv_max_f32 v15, v15, v16")
    k("v_mul_f32 v15, s41, v15\nv_sub_f32 v15, 0, v15\n;STAMP")
    for j in range(9):
        b = SR+8*j; p = 168+4*(j & 1)
        for i in range(8): k(f"v_fma_f32 v{b+i}, v{b+i}, s41, v15")
        for i in range(8): k(f"v_exp_f32 v{b+i}, v{b+i}")
        k("s_nop 0")
        for i in range(4): k(f"v_cvt_pk_bf16_f32 v{p+i}, v{b+2*i}, v{b+2*i+1}")
        k(f"s_waitcnt lgkmcnt({min(15, 16-2*j)})" if j else "s_waitcnt lgkmcnt(15)\ns_nop 0")
        k("s_nop 0")
        for tau in range(2):
            c = "0" if j == 0 else f"v[{176+4*tau}:{179+4*tau}]"
            k(f"v_mfma_f32_16x16x32_bf16 v[{176+4*tau}:{179+4*tau}], v[{KR+4*(2*j+tau)}:{KR+4*(2*j+tau)+3}], v[{p}:{p+3}], {c}")
    k(f"""s_lshl_b32 s36, s25, 3
    s_add_u32 s36, s36, s22
    s_lshl_b32 s36, s36, 4
    s_add_u32 s36, s36, s24
    s_lshl_b32 s36, s36, 10
    s_add_u32 s36, s36, {lo+OF}
    s_nop 4
    v_mov_b32 v17, v180""")
    bcast_row3(k, 17, 16)
    k("v_rcp_f32 v17, v17\ns_nop 0")
    for i in range(8): k(f"v_mul_f32 v{176+i}, v{176+i}, v17")
    k(f"""v_cvt_pk_bf16_f32 v184, v176, v177
    v_cvt_pk_bf16_f32 v185, v178, v179
    v_cvt_pk_bf16_f32 v186, v180, v181
    v_cvt_pk_bf16_f32 v187, v182, v183
    buffer_store_dwordx4 v[184:187], v3, s[28:31], s36 offen
    """)
    k.ts_end()
    k(f"L_{L}_done:")
    return k
```

```python
from asmgen import *
from layout import *
BOFF = 65536; POFF = 131072
def gen_k4(final, ts=None):
    name = "k7_kernel" if final else "k4_kernel"; L = name[:2]
    k = Kernel(name, 224, 256, lds=POFF+(0 if final else 4096), vgpr=128, sgpr=64, ts_idx=ts)
    k.ts_start()
    k(f"""s_cmp_ge_u32 s2, 224
    s_cbranch_scc1 L_{L}_done
    s_load_dwordx2 s[8:9], s[0:1], 88
    s_load_dwordx2 s[10:11], s[0:1], 72
    v_lshrrev_b32 v1, 6, v0
    v_and_b32 v2, 63, v0
    v_readfirstlane_b32 s22, v1
    s_mov_b32 s23, 0x24924925
    s_lshr_b32 s26, s2, 3
    s_mul_hi_u32 s24, s26, s23
    s_mul_i32 s25, s24, 7
    s_sub_u32 s25, s26, s25
    s_and_b32 s26, s2, 7
    s_lshl_b32 s26, s26, 2
    s_add_u32 s24, s24, s26
    v_lshlrev_b32 v3, 4, v2
    ;S93
    s_lshl_b32 s26, s22, 14
    s_lshl_b32 s27, s24, 16
    s_add_u32 s27, s27, s26
    s_add_u32 s27, s27, {OF + (L2OFF if final else 0)}
    s_lshl_b32 s32, s25, 16
    s_add_u32 s32, s32, s26
    s_add_u32 s32, s32, {WOF}
    s_add_u32 s33, s26, {BOFF}
    s_lshr_b32 s34, s22, 1
    s_and_b32 s35, s22, 1
    s_waitcnt lgkmcnt(0)
    ;STAMP
    """)
    k.srd(28, 8, WS_BYTES)
    for grp in range(4):
        k(f"s_mov_b32 m0, s26\ns_add_u32 s26, s26, 4096")
        for i in range(4): k(f"buffer_load_dwordx4 v3, s[28:31], s27 offen offset:{1024*i} lds")
        k(f"s_add_u32 s27, s27, 4096\ns_mov_b32 m0, s33\ns_add_u32 s33, s33, 4096")
        for i in range(4): k(f"buffer_load_dwordx4 v3, s[28:31], s32 offen offset:{1024*i} lds")
        k(f"s_add_u32 s32, s32, 4096")
    k(f"""s_lshl_b32 s36, s24, 2
    s_lshl_b32 s37, s34, 1
    s_add_u32 s36, s36, s37
    s_mul_i32 s38, s36, 14
    s_lshl_b32 s39, s25, 1
    s_add_u32 s39, s39, s35
    s_add_u32 s38, s38, s39
    s_lshl_b32 s38, s38, 10
    s_add_u32 s40, s38, {X3F if final else X1F}
    s_add_u32 s41, s40, {14*1024}
    buffer_load_dwordx4 v[64:67], v3, s[28:31], s40 offen
    buffer_load_dwordx4 v[68:71], v3, s[28:31], s41 offen
    """)
    nx = 2
    k(f"""s_lshl_b32 s40, s34, 15
    v_add_u32 v4, s40, v3
    s_lshl_b32 s40, s35, 15
    s_add_u32 s40, s40, {BOFF}
    v_add_u32 v5, s40, v3
    v_mov_b32 v100, 0x3f803f80
    v_mov_b32 v101, 0x3f80
    v_mov_b32 v102, 0x3f800000
    s_mov_b32 s42, 0xffff0000
    ;STAMP
    s_waitcnt vmcnt({nx})
    s_barrier
    ;STAMP
    """)
    def rd(s):
        b = 24 + 16*(s % 2)
        k(f"""ds_read_b128 v[{b}:{b+3}], v4 offset:{1024*s}
        ds_read_b128 v[{b+4}:{b+7}], v4 offset:{16384+1024*s}
        ds_read_b128 v[{b+8}:{b+11}], v5 offset:{1024*s}
        ds_read_b128 v[{b+12}:{b+15}], v5 offset:{16384+1024*s}""")
    rd(0)
    for s in range(16):
        if s < 15: rd(s+1)
        k(f"s_waitcnt lgkmcnt({4 if s < 15 else 0})")
        b = 24 + 16*(s % 2)
        for mu in range(2):
            for nt in range(2):
                c = 8 + (mu*2+nt)*4
                cc = "0" if s == 0 else f"v[{c}:{c+3}]"
                k(f"v_mfma_f32_16x16x32_bf16 v[{c}:{c+3}], v[{b+8+4*nt}:{b+11+4*nt}], v[{b+4*mu}:{b+4*mu+3}], {cc}")
    k(";STAMP\ns_waitcnt vmcnt(0)\ns_nop 6")
    for mu in range(2):
        for i in range(4):
            c = 8 + mu*8 + 2*i; x = 64+4*mu+i
            k(f"""v_lshlrev_b32 v{28+2*i}, 16, v{x}
            v_and_b32 v{29+2*i}, s42, v{x}
            v_add_f32 v{28+2*i}, v{28+2*i}, v{c}
            v_add_f32 v{29+2*i}, v{29+2*i}, v{c+1}""")
        import os
        if final and mu == 0 and os.environ.get("INJECT"):
            import struct
            bits = struct.unpack("<I", struct.pack("<f", float(os.environ["INJECT"])))[0]
            k(f"""v_mov_b32 v90, {bits}
            v_mov_b32 v91, 0
            v_mov_b32 v92, s2
            v_or_b32 v92, v92, v0
            v_cmp_eq_u32 vcc, 0, v92
            s_nop 1
            v_cndmask_b32 v90, v91, v90, vcc
            v_add_f32 v28, v28, v90""")
        for i in range(4): k(f"v_cvt_pk_bf16_f32 v{80+4*mu+i}, v{28+2*i}, v{29+2*i}")
    if final:
        k.srd(44, 10, NB)
        k(f"""v_and_b32 v6, 15, v2
        s_movk_i32 s40, 896
        v_mul_lo_u32 v6, v6, s40
        v_lshrrev_b32 v7, 4, v2
        v_lshl_add_u32 v6, v7, 3, v6
        s_mul_i32 s40, s36, {16*896}
        s_lshl_b32 s41, s39, 6
        s_add_u32 s40, s40, s41
        s_add_u32 s41, s40, {16*896}
        buffer_store_dwordx2 v[80:81], v6, s[44:47], s40 offen
        buffer_store_dwordx2 v[82:83], v6, s[44:47], s40 offen offset:32
        buffer_store_dwordx2 v[84:85], v6, s[44:47], s41 offen
        buffer_store_dwordx2 v[86:87], v6, s[44:47], s41 offen offset:32
        """)
    else:
        k(f"""s_add_u32 s40, s38, {X2F}
        s_add_u32 s41, s40, {14*1024}
        buffer_store_dwordx4 v[80:83], v3, s[28:31], s40 offen
        buffer_store_dwordx4 v[84:87], v3, s[28:31], s41 offen
        """)
        for mu in range(2):
            Sb = 104 + 2*mu
            for i in range(4):
                X = 80+4*mu+i
                def acc(j): return "0" if i == 0 else f"v{Sb+j}"
                k(f"""v_dot2_f32_bf16 v{Sb+0}, v{X}, v100, {acc(0)}
                v_dot2_f32_bf16 v{Sb+1}, v{X}, v{X}, {acc(1)}""")
        k(f"""v_and_b32 v6, 15, v2
        v_lshrrev_b32 v7, 4, v2
        v_lshlrev_b32 v6, 6, v6
        v_lshl_add_u32 v6, v7, 3, v6
        s_lshl_b32 s40, s34, 11
        s_lshl_b32 s41, s35, 5
        s_add_u32 s40, s40, s41
        s_add_u32 s40, s40, {POFF}
        v_add_u32 v6, s40, v6
        ds_write_b64 v6, v[104:105]
        ds_write_b64 v6, v[106:107] offset:1024
        v_lshlrev_b32 v6, 6, v2
        v_add_u32 v7, {POFF}, v6
        s_waitcnt lgkmcnt(0)
        s_barrier
        s_cmp_lg_u32 s22, 0
        s_cbranch_scc1 L_k4_end
        """)
        for j in range(4): k(f"ds_read_b128 v[{24+4*j}:{27+4*j}], v7 offset:{16*j}")
        k(f"""s_lshl_b32 s40, s24, 12
        s_lshl_b32 s41, s25, 3
        s_add_u32 s40, s40, s41
        s_add_u32 s40, s40, {PS}
        s_waitcnt lgkmcnt(0)""")
        for st in (8, 4, 2):
            for j in range(st): k(f"v_add_f32 v{24+j}, v{24+j}, v{24+st+j}")
        k("buffer_store_dwordx2 v[24:25], v6, s[28:31], s40 offen\nL_k4_end:")
    k.ts_end()
    k(f"L_{L}_done:")
    return k
```

```python
from asmgen import *
from layout import *
from k2 import *
def gen_k5(ts=None):
    EX = 57344
    k = Kernel("k5_kernel", 256, 512, lds=EX+EXSZ, vgpr=172, sgpr=64, agpr=84, ts_idx=ts)
    vm = VM()
    k.ts_start()
    ids(k, "k5")
    k(f"""v_and_b32 v4, 15, v2
    v_lshrrev_b32 v5, 4, v2
    v_lshlrev_b32 v4, 6, v4
    v_lshl_add_u32 v4, v5, 4, v4
    v_cmp_gt_u32 vcc, 3, v5
    s_lshl_b32 s26, s24, 2
    s_add_u32 s26, s26, s23
    s_lshl_b32 s27, s26, 10
    s_add_u32 s27, s27, {PS}
    s_mul_i32 s32, s26, {14*1024}
    s_mul_i32 s35, s21, {NS*1024}
    s_add_u32 s33, s32, s35
    s_add_u32 s34, s33, {YF}
    s_add_u32 s33, s33, {X2F}
    s_waitcnt lgkmcnt(0)
    ;STAMP
    """)
    k.srd(28, 8, WS_BYTES)
    k("buffer_load_dwordx4 v[8:11], v4, s[28:31], s27 offen"); vm.issue("ps")
    X = 88; Y = 116
    def xy_load(s):
        if s and s % 4 == 0: k("s_add_u32 s33, s33, 4096\ns_add_u32 s34, s34, 4096")
        k(f"buffer_load_dwordx4 v[{X+4*s}:{X+4*s+3}], v3, s[28:31], s33 offen offset:{1024*(s%4)}")
        k(f"buffer_load_dwordx4 v[{Y+4*s}:{Y+4*s+3}], v3, s[28:31], s34 offen offset:{1024*(s%4)}")
        vm.issue(("x", s), 2)
    XD = 3
    for s in range(XD): xy_load(s)
    w_setup(k)
    C = 160; S = 144
    k(f"""s_mov_b32 s38, 0xffff0000
    v_mov_b32 v{S+4}, 0x3f803f80
    s_mul_i32 s36, s23, {14*1024}
    s_add_u32 s36, s36, s35
    v_add_u32 v5, s36, v3
    s_mul_i32 s36, s21, {2*14*1024}
    s_add_u32 s37, s36, s35
    v_add_u32 v150, s37, v3
    s_sub_u32 s37, {2*14*1024}, s36
    s_add_u32 s37, s37, s35
    v_add_u32 v151, s37, v3
    ;STAMP
    s_waitcnt vmcnt({vm.n_after('ps')})
    ;STAMP
    v_cndmask_b32 v10, 0, v10, vcc
    v_cndmask_b32 v11, 0, v11, vcc
    v_add_f32 v8, v8, v10
    v_add_f32 v9, v9, v11""")
    xreduce(k, [8, 9], [10, 11])
    ln_stats(k, 8, 9)
    k("""v_mul_f32 v8, v8, v9
    v_sub_f32 v8, 0, v8""")
    for s in range(NS):
        if s + XD < NS: xy_load(s+XD)
        else: w_load(k, vm, s + XD - NS)
        k(f"s_waitcnt vmcnt({vm.n_after(('x', s))})")
        t = 16 + 16*(s & 1)
        for i in range(4):
            k(f"""v_lshlrev_b32 v{t+2*i}, 16, v{X+4*s+i}
            v_and_b32 v{t+2*i+1}, s38, v{X+4*s+i}
            v_lshlrev_b32 v{t+8+2*i}, 16, v{Y+4*s+i}
            v_and_b32 v{t+9+2*i}, s38, v{Y+4*s+i}""")
        for i in range(8): k(f"v_fma_f32 v{48+i}, v{t+i}, v9, v8")
        for i in range(8): k(f"v_fma_f32 v{48+i}, v{48+i}, v{t+8+i}, v{t+i}")
        for i in range(4): k(f"v_cvt_pk_bf16_f32 v{X+4*s+i}, v{48+2*i}, v{49+2*i}")
        for i in range(8):
            if s == 0 and i < 2: k(f"v_mov_b32 v{S+i}, v{48+i}\nv_mul_f32 v{S+2+i}, v{48+i}, v{48+i}")
            else: k(f"v_add_f32 v{S+(i&1)}, v{S+(i&1)}, v{48+i}\nv_fma_f32 v{S+2+(i&1)}, v{48+i}, v{48+i}, v{S+2+(i&1)}")
        k(f"ds_write_b128 v5, v[{X+4*s}:{X+4*s+3}] offset:{1024*s}")
    cs_load(k, vm, C)
    k(f"""s_lshl_b32 s36, s21, 3
    s_add_u32 s36, s36, s25
    s_lshl_b32 s37, s36, 10
    s_mul_i32 s39, s23, {14*1024}
    s_add_u32 s39, s39, s37
    v_add_u32 v6, s39, v3
    s_add_u32 s37, s37, s32
    s_add_u32 s37, s37, {X3F}
    s_cmp_ge_u32 s36, 14
    s_cselect_b32 s48, 0x40000000, 0
    v_or_b32 v7, s48, v3
    ;STAMP
    s_waitcnt lgkmcnt(0)
    s_barrier
    ;STAMP
    ds_read_b128 v[152:155], v6""")
    def rd(s):
        for mu in range(4):
            b = AF + 16*(s & 1) + 4*mu
            k(f"ds_read_b128 v[{b}:{b+3}], v{150+(mu>>1)} offset:{((mu&1)*14+s)*1024}")
    rd(0)
    k("s_waitcnt lgkmcnt(4)\nbuffer_store_dwordx4 v[152:155], v7, s[28:31], s37 offen"); vm.issue("st")
    for s in range(NS):
        if s + PD < NS: w_load(k, vm, s+PD)
        if s < NS-1: rd(s+1)
        k(f"s_waitcnt vmcnt({vm.n_after(('w', s))}) lgkmcnt({4 if s < NS-1 else 0})")
        mfmas(k, s)
        if s in (1, 3): k.stamp()
    k.stamp()
    epilogue(k, L2OFF, C, S, EX, 88)
    k.ts_end()
    k("L_k5_done:")
    return k
```

```python
S, D, H, DH = 2048, 448, 16, 28
MB = 1 << 20
KVT = 0*MB; X0T = 2*MB; ST0 = 4*MB; CSO = 4*MB + 65536; YT = 6*MB; X1T = 8*MB
WQF = 10*MB; WOF = 12*MB
X1F = 14*MB; YF = 16*MB; X2F = 18*MB; X3F = 20*MB
QF = 22*MB; KF = 24*MB; VF = 26*MB; OF = 28*MB; PS = 30*MB
L2OFF = 10*MB
WS_BYTES = 40*MB
NB = S*D*2
TP = 4224
def perm(g, e): return 4*g+e if e < 4 else 16+4*g+(e-4)
```

```python
class VM:
    def __init__(self): self.ops = []
    def issue(self, tag, n=1): self.ops += [tag]*n
    def n_after(self, tag):
        i = max(j for j, t in enumerate(self.ops) if t == tag)
        return min(63, len(self.ops) - 1 - i)

def xreduce(k, regs, tmp, op="v_add_f32"):
    for sw in ("v_permlane16_swap_b32", "v_permlane32_swap_b32"):
        for r, t in zip(regs, tmp): k(f"v_mov_b32 v{t}, v{r}")
        k("s_nop 1")
        for r, t in zip(regs, tmp): k(f"{sw} v{r}, v{t}")
        k("s_nop 1")
        for r, t in zip(regs, tmp): k(f"{op} v{r}, v{r}, v{t}")

def ln_stats(k, s1, s2):
    k(f"""v_mul_f32 v{s1}, 0x3b124925, v{s1}
    v_mul_f32 v{s2}, 0x3b124925, v{s2}
    v_fma_f32 v{s2}, -v{s1}, v{s1}, v{s2}
    v_max_f32 v{s2}, 0, v{s2}
    v_add_f32 v{s2}, 0x3727c5ac, v{s2}
    v_rsq_f32 v{s2}, v{s2}
    s_nop 0""")

def bcast_row3(k, x, t):
    k(f"""v_mov_b32 v{t}, v{x}
    s_nop 1
    v_permlane32_swap_b32 v{x}, v{t}
    s_nop 1
    v_mov_b32 v{x}, v{t}
    s_nop 1
    v_permlane16_swap_b32 v{t}, v{x}
    s_nop 1""")
```

```python
from asmgen import *
from layout import *
RO = 8192

def gen_k0(ts=None):
    k = Kernel("k0_kernel", 256, 512, lds=RO+2*7168, vgpr=104, sgpr=72, ts_idx=ts)
    k.ts_start()
    k("""s_cmp_ge_u32 s2, 256
    s_cbranch_scc1 L_k0_done
    s_load_dwordx8 s[4:11], s[0:1], 0
    s_load_dwordx2 s[12:13], s[0:1], 32
    s_load_dwordx4 s[16:19], s[0:1], 56
    s_load_dwordx2 s[20:21], s[0:1], 88
    v_lshrrev_b32 v1, 6, v0
    v_and_b32 v2, 63, v0
    v_readfirstlane_b32 s22, v1
    s_mov_b32 s23, 0x24924925
    s_mul_hi_u32 s48, s2, s23
    s_mul_i32 s49, s48, 7
    s_sub_u32 s49, s2, s49
    ;S93
    """)
    k(f"""v_lshrrev_b32 v3, 3, v0
    v_and_b32 v4, 7, v0
    s_lshl_b32 s50, s48, 6
    v_add_u32 v5, s50, v3
    s_movk_i32 s51, 896
    v_mul_lo_u32 v5, v5, s51
    s_lshl_b32 s52, s49, 7
    v_lshl_add_u32 v6, v4, 4, s52
    v_add_u32 v5, v5, v6
    v_subrev_u32 v7, 896, v5
    v_subrev_u32 v8, 1792, v5
    v_subrev_u32 v9, 2688, v5
    v_lshlrev_b32 v6, 2, v6
    v_mov_b32 v63, 0x40000000
    s_lshl_b32 s53, s2, 3
    s_add_u32 s53, s53, s22
    s_mul_i32 s54, s53, 896
    v_lshlrev_b32 v60, 4, v2
    v_cmp_gt_u32 vcc, 56, v2
    v_add_u32 v61, s54, v60
    v_and_b32 v64, 15, v2
    v_lshrrev_b32 v65, 4, v2
    v_cndmask_b32 v61, v63, v61, vcc
    s_mov_b64 s[66:67], 0
    """)
    k(f"""s_mul_i32 s55, s2, 7
    s_add_u32 s55, s55, s22
    s_cmp_ge_u32 s55, 1344
    s_cbranch_scc1 L_k0_wo
    s_mov_b32 s54, 0x12492493
    s_mul_hi_u32 s56, s55, s54
    s_mul_i32 s57, s56, 14
    s_sub_u32 s57, s55, s57
    s_mov_b32 s54, 0x2aaaaaab
    s_mul_hi_u32 s58, s56, s54
    s_mul_i32 s59, s58, 6
    s_sub_u32 s59, s56, s59
    s_lshr_b32 s64, s59, 1
    s_and_b32 s62, s59, 1
    s_mul_i32 s64, s64, 448
    s_mul_i32 s63, s58, 28
    s_add_u32 s64, s64, s63
    s_lshl_b32 s62, s62, 4
    v_add_u32 v64, s62, v64
    v_cmp_gt_u32 vcc, 28, v64
    s_cmp_eq_u32 s59, 3
    s_cselect_b32 s60, 28, 99
    v_cmp_eq_u32 s[66:67], s60, v64
    v_add_u32 v64, s64, v64
    v_lshlrev_b32 v64, 1, v64
    s_lshl_b32 s57, s57, 5
    v_lshl_add_u32 v65, v65, 2, s57
    s_movk_i32 s54, 2688
    v_mul_lo_u32 v65, v65, s54
    v_add_u32 v64, v64, v65
    v_cndmask_b32 v64, v63, v64, vcc
    v_mov_b32 v66, v64
    s_lshl_b32 s55, s55, 10
    s_add_u32 s55, s55, {WQF}
    s_waitcnt lgkmcnt(0)
    """)
    k.srd(44, 16, 448*1344*2)
    k(f"""s_branch L_k0_go
    L_k0_wo:
    s_sub_u32 s55, s55, 1344
    s_lshr_b32 s56, s55, 4
    s_and_b32 s57, s55, 15
    s_lshl_b32 s56, s56, 4
    v_add_u32 v64, s56, v64
    v_lshlrev_b32 v64, 1, v64
    s_mul_i32 s57, s57, 28
    v_cmp_gt_u32 vcc, 3, v65
    v_lshl_add_u32 v65, v65, 2, s57
    s_movk_i32 s54, 896
    v_mul_lo_u32 v65, v65, s54
    v_add_u32 v64, v64, v65
    v_cndmask_b32 v66, v63, v64, vcc
    s_lshl_b32 s55, s55, 10
    s_add_u32 s55, s55, {WOF}
    s_waitcnt lgkmcnt(0)
    """)
    k.srd(44, 18, 448*448*2)
    k("L_k0_go:\n;STAMP")
    k.srd(24, 4, NB); k.srd(28, 6, NB); k.srd(32, 8, NB); k.srd(36, 10, 448*8); k.srd(40, 20, WS_BYTES)
    k("""buffer_load_dwordx4 v[52:55], v61, s[24:27], 0 offen
    buffer_load_dwordx4 v[12:15], v9, s[28:31], 0 offen
    buffer_load_dwordx4 v[16:19], v8, s[28:31], 0 offen
    buffer_load_dwordx4 v[20:23], v7, s[28:31], 0 offen
    buffer_load_dwordx4 v[24:27], v5, s[28:31], 0 offen
    buffer_load_dwordx4 v[28:31], v5, s[32:35], 0 offen
    buffer_load_dwordx4 v[36:39], v6, s[36:39], 0 offen
    buffer_load_dwordx4 v[40:43], v6, s[36:39], 0 offen offset:16
    buffer_load_dwordx4 v[44:47], v6, s[36:39], 0 offen offset:32
    buffer_load_dwordx4 v[48:51], v6, s[36:39], 0 offen offset:48
    s_cmp_eq_u32 s22, 7
    s_cbranch_scc1 L_k0_pf
    s_mov_b32 s56, s54
    s_lshl_b32 s57, s54, 1
    s_add_u32 s58, s57, s54
    s_lshl_b32 s59, s54, 4
    s_add_u32 s60, s59, s56
    s_add_u32 s61, s59, s57
    s_add_u32 s62, s59, s58
    buffer_load_ushort v68, v64, s[44:47], 0 offen
    buffer_load_ushort v72, v64, s[44:47], s56 offen
    buffer_load_ushort v69, v64, s[44:47], s57 offen
    buffer_load_ushort v73, v64, s[44:47], s58 offen
    buffer_load_ushort v70, v66, s[44:47], s59 offen
    buffer_load_ushort v74, v66, s[44:47], s60 offen
    buffer_load_ushort v71, v66, s[44:47], s61 offen
    buffer_load_ushort v75, v66, s[44:47], s62 offen
    s_branch L_k0_A
    L_k0_pf:""")
    k.srd(44, 12, NB)
    k(f"""s_mul_i32 s56, s2, 7168
    s_add_u32 s57, s56, 4096
    s_lshl_b32 s58, s2, 9
    s_add_u32 s58, s58, {PS}
    v_mov_b32 v72, -1
    v_mov_b32 v73, -1
    v_lshlrev_b32 v74, 3, v2""")
    k("""v_lshlrev_b32 v75, 7, v2
    buffer_load_dword v68, v75, s[44:47], s56 offen
    s_getpc_b64 s[44:45]
    L_k0_pc:
    s_mov_b32 s46, L_code_end-L_k0_pc
    s_mov_b32 s47, 0x20000
    s_mov_b32 s56, 0""")
    for i in range(5):
        k(f"buffer_load_dword v{69+(i&1)}, v75, s[44:47], s56 offen\ns_add_u32 s56, s56, 8192")
    k(f"""buffer_store_dwordx2 v[72:73], v74, s[40:43], s58 offen
    v_mov_b32 v96, 0
    v_cmp_gt_u32 vcc, 6, v2
    v_lshlrev_b32 v74, 15, v2
    s_lshl_b32 s58, s2, 7
    s_add_u32 s58, s58, {FL}
    v_cndmask_b32 v74, v63, v74, vcc
    buffer_store_dword v96, v74, s[40:43], s58 offen""")
    k(f"""L_k0_A:
    s_mov_b32 s56, 0xffff0000
    s_mov_b32 s57, 0x01000504
    s_mov_b32 s58, 0x03020706
    v_mov_b32 v62, 0x3f803f80
    v_lshlrev_b32 v10, 7, v3
    v_lshl_add_u32 v10, v4, 4, v10
    s_mul_i32 s59, s22, 896
    s_add_u32 s59, s59, {RO}
    v_add_u32 v11, s59, v60
    v_mov_b32 v82, 0
    v_mov_b32 v83, 0
    ;STAMP
    s_waitcnt vmcnt(17)
    ;STAMP
    """)
    for i in range(4):
        k(f"v_dot2_f32_bf16 v82, v{52+i}, v62, v82\nv_dot2_f32_bf16 v83, v{52+i}, v{52+i}, v83")
    for i in range(4): k(f"v_lshlrev_b32 v{84+2*i}, 16, v{52+i}\nv_and_b32 v{85+2*i}, s56, v{52+i}")
    for sh in ["row_shr:1", "row_shr:2", "row_shr:4", "row_shr:8"]:
        k(f"v_add_f32_dpp v82, v82, v82 {sh} row_mask:0xf bank_mask:0xf bound_ctrl:0\nv_add_f32_dpp v83, v83, v83 {sh} row_mask:0xf bank_mask:0xf bound_ctrl:0\ns_nop 1")
    k("""v_add_f32_dpp v82, v82, v82 row_bcast:15 row_mask:0xa bank_mask:0xf
    v_add_f32_dpp v83, v83, v83 row_bcast:15 row_mask:0xa bank_mask:0xf
    s_nop 1
    v_add_f32_dpp v82, v82, v82 row_bcast:31 row_mask:0xc bank_mask:0xf
    v_add_f32_dpp v83, v83, v83 row_bcast:31 row_mask:0xc bank_mask:0xf
    v_mul_f32 v82, 0x3b124925, v82
    v_mul_f32 v83, 0x3b124925, v83
    v_fma_f32 v83, -v82, v82, v83
    v_max_f32 v83, 0, v83
    v_add_f32 v83, 0x3727c5ac, v83
    v_rsq_f32 v83, v83
    s_nop 0
    v_mul_f32 v82, v82, v83
    v_sub_f32 v82, 0, v82
    s_nop 0
    v_readlane_b32 s60, v83, 63
    v_readlane_b32 s61, v82, 63
    v_cmp_gt_u32 vcc, 56, v2
    s_and_saveexec_b64 s[64:65], vcc
    v_mov_b32 v82, s61
    ds_write_b128 v11, v[52:55]""")
    for i in range(8): k(f"v_fma_f32 v{84+i}, v{84+i}, s60, v82")
    for i in range(4): k(f"v_cvt_pk_bf16_f32 v{92+i}, v{84+2*i}, v{85+2*i}")
    k("""ds_write_b128 v11, v[92:95] offset:7168
    s_mov_b64 exec, s[64:65]
    s_waitcnt vmcnt(8)""")
    for p in range(4):
        k(f"""v_perm_b32 v76, v{24+p}, v{20+p}, s57
        v_perm_b32 v77, v{24+p}, v{20+p}, s58
        v_perm_b32 v78, v{16+p}, v{12+p}, s57
        v_perm_b32 v79, v{16+p}, v{12+p}, s58
        v_dot2_f32_bf16 v76, v76, v{36+4*p}, 0
        v_dot2_f32_bf16 v77, v77, v{38+4*p}, 0
        v_lshlrev_b32 v80, 16, v{28+p}
        v_and_b32 v81, s56, v{28+p}
        v_dot2_f32_bf16 v76, v78, v{37+4*p}, v76
        v_dot2_f32_bf16 v77, v79, v{39+4*p}, v77
        s_nop 2
        v_mul_f32 v76, v76, v80
        v_mul_f32 v77, v77, v81
        v_cvt_pk_bf16_f32 v{56+p}, v76, v77""")
    k(f"""ds_write_b128 v10, v[56:59]
    s_lshr_b32 s59, s22, 1
    s_and_b32 s60, s22, 1
    s_lshl_b32 s60, s60, 2
    v_lshrrev_b32 v76, 4, v2
    v_add_u32 v76, s60, v76
    v_and_b32 v77, 15, v2
    v_lshrrev_b32 v78, 2, v77
    v_lshl_add_u32 v78, v76, 3, v78
    v_lshlrev_b32 v78, 7, v78
    v_and_b32 v79, 3, v77
    v_lshl_add_u32 v78, v79, 3, v78
    s_lshl_b32 s61, s59, 5
    v_add_u32 v78, s61, v78
    s_lshl_b32 s61, s49, 6
    s_lshl_b32 s62, s59, 4
    s_add_u32 s61, s61, s62
    v_add_u32 v77, s61, v77
    s_movk_i32 s63, {TP}
    v_mul_lo_u32 v77, v77, s63
    v_lshl_add_u32 v77, v76, 4, v77
    s_cmp_ge_u32 s2, 224
    s_cselect_b32 s62, 0x40000000, 0
    v_or_b32 v77, s62, v77
    s_lshl_b32 s61, s48, 7
    s_add_u32 s61, s61, {KVT}
    """)
    k(f"""v_mul_lo_u32 v80, v4, s51
    v_lshrrev_b32 v81, 2, v3
    v_and_b32 v79, 3, v3
    v_lshl_add_u32 v80, v81, 6, v80
    v_lshl_add_u32 v80, v79, 3, v80
    v_lshlrev_b32 v81, 10, v81
    v_lshl_add_u32 v81, v79, 8, v81
    v_lshl_add_u32 v81, v4, 4, v81
    v_cmp_gt_u32 vcc, 56, v3
    s_lshr_b32 s62, s2, 1
    s_mul_i32 s62, s62, {14*1024}
    s_and_b32 s63, s2, 1
    s_lshl_b32 s63, s63, 7
    s_add_u32 s62, s62, s63
    s_add_u32 s63, s62, {Q0F}
    s_add_u32 s62, s62, {X0F}
    v_cndmask_b32 v81, v63, v81, vcc
    s_waitcnt lgkmcnt(0)
    s_barrier
    ds_read_b64_tr_b16 v[84:85], v78
    ds_read_b64_tr_b16 v[86:87], v78 offset:512
    ds_read_b64 v[88:89], v80 offset:{RO}
    ds_read_b64 v[90:91], v80 offset:{RO+32}
    ds_read_b64 v[92:93], v80 offset:{RO+7168}
    ds_read_b64 v[94:95], v80 offset:{RO+7168+32}
    s_waitcnt lgkmcnt(4)
    ;STAMP
    buffer_store_dwordx4 v[84:87], v77, s[40:43], s61 offen
    s_waitcnt lgkmcnt(2)
    buffer_store_dwordx4 v[88:91], v81, s[40:43], s62 offen
    s_waitcnt lgkmcnt(0)
    buffer_store_dwordx4 v[92:95], v81, s[40:43], s63 offen
    s_cmp_eq_u32 s22, 7
    s_cbranch_scc1 L_k0_end
    s_waitcnt vmcnt(3)
    v_lshl_or_b32 v68, v72, 16, v68
    v_lshl_or_b32 v69, v73, 16, v69
    v_lshl_or_b32 v70, v74, 16, v70
    v_lshl_or_b32 v71, v75, 16, v71
    v_cndmask_b32 v68, v68, v62, s[66:67]
    v_cndmask_b32 v69, v69, v62, s[66:67]
    v_cndmask_b32 v70, v70, v62, s[66:67]
    v_cndmask_b32 v71, v71, v62, s[66:67]
    buffer_store_dwordx4 v[68:71], v60, s[40:43], s55 offen
    L_k0_end:
    """)
    k.ts_end()
    k("L_k0_done:")
    return k
```

```python
from asmgen import *
from layout import *
from common import *
CS = 4160; GOFF = 4608; CHS = GOFF + 8*CS
EXO = 2*CHS
N0 = 20

def gen_k1(ts=None):
    k = Kernel("k1_kernel", 248, 256, lds=EXO+32768, vgpr=136, sgpr=64, agpr=256, ts_idx=ts)
    k.ts_start()
    k(f"""s_cmp_ge_u32 s2, 248
    s_cbranch_scc1 L_k1_done
    s_load_dwordx4 s[4:7], s[0:1], 32
    s_load_dwordx2 s[8:9], s[0:1], 88
    v_lshrrev_b32 v1, 6, v0
    v_and_b32 v2, 63, v0
    v_readfirstlane_b32 s22, v1
    s_and_b32 s12, s2, 7
    s_mul_i32 s12, s12, 7
    s_lshr_b32 s13, s2, 5
    s_add_u32 s12, s12, s13
    s_bfe_u32 s13, s2, 0x20003
    s_lshr_b32 s14, s12, 2
    s_and_b32 s15, s12, 3
    s_lshl_b32 s16, s14, 5
    s_lshl_b32 s17, s15, 2
    s_add_u32 s16, s16, s17
    s_and_b32 s17, s13, 1
    s_lshl_b32 s17, s17, 1
    s_add_u32 s16, s16, s17
    s_lshr_b32 s17, s13, 1
    s_lshl_b32 s17, s17, 4
    s_add_u32 s16, s16, s17
    s_lshl_b32 s10, s16, 1
    s_lshl_b32 s11, s16, 12
    v_lshlrev_b32 v3, 4, v0
    v_sub_u32 v3, 4064, v3
    v_add_u32 v3, s11, v3
    v_add_u32 v27, 16, v3
    v_lshlrev_b32 v4, 4, v2
    ;S93
    s_lshr_b32 s23, s22, 1
    s_and_b32 s33, s22, 1
    s_waitcnt lgkmcnt(0)
    ;STAMP
    """)
    k.srd(24, 4, NB); k.srd(28, 8, WS_BYTES)
    k("""s_cmp_ge_u32 s2, 224
    s_cbranch_scc1 L_k1_cs
    s_load_dword s34, s[6:7], s10""")
    HX = 104
    k(f"""buffer_load_dwordx4 v[{HX}:{HX+3}], v3, s[24:27], 0 offen
    buffer_load_dwordx4 v[{HX+4}:{HX+7}], v27, s[24:27], 0 offen
    s_movk_i32 s35, 4096
    buffer_load_dwordx4 v[{HX+8}:{HX+11}], v3, s[24:27], s35 offen
    buffer_load_dwordx4 v[{HX+12}:{HX+15}], v27, s[24:27], s35 offen
    s_mul_i32 s36, s23, {CHS}
    s_lshl_b32 s37, s33, 11
    s_add_u32 s38, s36, s37
    s_add_u32 s38, s38, 512
    s_mov_b32 m0, s38
    s_add_u32 s39, s16, s23
    s_mul_i32 s39, s39, {TP}
    s_add_u32 s39, s39, s37
    s_add_u32 s44, s39, {KVT}
    buffer_load_dwordx4 v4, s[28:31], s44 offen lds
    buffer_load_dwordx4 v4, s[28:31], s44 offen offset:1024 lds
    v_and_b32 v5, 15, v2
    v_lshrrev_b32 v6, 4, v2
    """)
    k(f"""s_mov_b32 s45, {4*14*1024}
    v_mul_lo_u32 v7, v6, s45
    v_lshl_add_u32 v7, v5, 4, v7
    s_mul_i32 s40, s22, {32*14*1024}
    s_lshl_b32 s41, s14, 10
    s_add_u32 s40, s40, s41
    s_lshl_b32 s41, s15, 8
    s_add_u32 s40, s40, s41
    s_lshl_b32 s41, s13, 2
    s_add_u32 s40, s40, s41
    """)
    XE = 64; QE = 72
    for tt in range(2):
        for r in range(4):
            o = (16*tt + r)*14*1024
            k(f"""s_add_u32 s45, s40, {X0F+o}
            s_add_u32 s46, s40, {Q0F+o}
            buffer_load_dword v{XE+4*tt+r}, v7, s[28:31], s45 offen
            buffer_load_dword v{QE+4*tt+r}, v7, s[28:31], s46 offen""")
    k(f"""v_mov_b32 v120, 0
    v_mov_b32 v121, 0
    v_mov_b32 v122, 0
    v_mov_b32 v123, 0
    s_mov_b32 s45, {CHS}
    v_bfe_u32 v9, v0, 5, 1
    v_mul_lo_u32 v9, v9, s45
    v_and_b32 v10, 31, v0
    v_lshl_add_u32 v9, v10, 4, v9
    ds_write_b128 v9, v[120:123]
    v_bfe_u32 v9, v0, 3, 1
    v_mul_lo_u32 v9, v9, s45
    v_and_b32 v10, 7, v0
    s_movk_i32 s45, {CS}
    v_mul_lo_u32 v10, v10, s45
    v_add_u32 v9, v9, v10
    ds_write_b128 v9, v[120:123] offset:{GOFF+258*16}
    v_lshlrev_b32 v9, 4, v0
    v_add_u32 v16, {CHS}, v9
    v_cmp_eq_u32 vcc, 255, v0
    v_mov_b32 v11, 0xffff
    v_and_b32 v10, 7, v5
    v_sub_u32 v10, 7, v10
    v_mul_lo_u32 v10, v10, s45
    v_lshrrev_b32 v12, 3, v5
    v_sub_u32 v12, v6, v12
    v_lshl_add_u32 v10, v12, 4, v10
    s_add_u32 s45, s36, {GOFF+4080-64*63}
    v_add_u32 v10, s45, v10
    v_lshlrev_b32 v12, 5, v5
    v_lshl_add_u32 v12, v6, 4, v12
    s_add_u32 s45, s36, {480-64*7}
    v_add_u32 v12, s45, v12
    ;STAMP
    s_waitcnt vmcnt(18)
    ;STAMP""")
    for ch in range(2):
        X = HX + 8*ch
        for w in range(4): k(f"v_cndmask_b32 v{X+w}, v{X+w}, v120, vcc")
        for c in range(8):
            o = 124 + 4*(c & 1)
            for q in range(4):
                e1 = 15 - c - 2*q
                if e1 & 1: k(f"v_alignbit_b32 v{o+q}, v{X+(e1-1)//2}, v{X+(e1-1)//2}, 16")
                else: k(f"v_bfi_b32 v{o+q}, v11, v{X+e1//2}, v{X+e1//2-1}")
            k(f"ds_write_b128 v{9 if ch == 0 else 16}, v[{o}:{o+3}] offset:{GOFF + c*CS + 32}")
    k(f""";STAMP
    s_waitcnt vmcnt(16) lgkmcnt(0)
    s_barrier
    ;STAMP
    s_lshr_b32 s49, s2, 3
    s_lshl_b32 s50, s49, 16
    s_lshl_b32 s51, s22, 14
    s_add_u32 s50, s50, s51
    s_add_u32 s50, s50, {WQF}
    s_add_u32 s51, s50, 8192
    v_lshlrev_b32 v13, 7, v2
    buffer_load_dword v132, v13, s[28:31], s50 offen
    buffer_load_dword v133, v13, s[28:31], s51 offen
    s_lshl_b32 s45, s22, 13
    s_add_u32 s45, s45, {EXO}
    v_add_u32 v13, s45, v4
    s_lshl_b32 s45, s22, 11
    s_add_u32 s45, s45, {EXO}
    v_add_u32 v14, s45, v4
    s_cmp_eq_u32 s33, 1
    s_cbranch_scc1 L_k1_w1""")
    ACC = 32; HR = 16
    def conv(n_lo, n_hi, dterm):
        q = []; loaded = set(); started = set()
        def issue(n):
            k(f"ds_read_b128 v[{HR+4*(n%4)}:{HR+4*(n%4)+3}], v10 offset:{64*(63-n)}"); q.append(("H", n))
            for p in range(7, -1, -1):
                d = 8*p - n
                if d >= -7 and d not in loaded:
                    loaded.add(d)
                    k(f"ds_read_b128 a[{4*(d+7)}:{4*(d+7)+3}], v12 offset:{64*(d+7)}"); q.append(("F", d))
        def wait(tags):
            idx = [i for i, t in enumerate(q) if t in tags]
            if idx:
                last = max(idx); n_out = len(q) - 1 - last
                k(f"s_waitcnt lgkmcnt({min(15, n_out)})")
                del q[:last+1 if n_out <= 15 else len(q)-15]
        D = 2
        for n in range(n_lo, min(n_lo+D, n_hi)): issue(n)
        if dterm:
            k("""s_lshl_b32 s45, s23, 4
            s_lshr_b32 s45, s34, s45
            s_and_b32 s45, s45, 0xffff
            s_lshl_b32 s46, s45, 16
            v_and_b32 v84, 1, v5
            v_cmp_eq_u32 vcc, 1, v84
            v_mov_b32 v85, s45
            v_mov_b32 v86, s46
            v_lshlrev_b32 v84, 2, v6
            v_cndmask_b32 v85, v85, v86, vcc
            v_lshrrev_b32 v86, 1, v5
            v_add_u32 v86, 8, v86
            v_sub_u32 v86, v86, v84""")
            for w in range(4): k(f"v_cmp_eq_u32 s[{52+2*w}:{53+2*w}], {w}, v86")
            k("s_nop 1")
            for w in range(4): k(f"v_cndmask_b32 v{80+w}, 0, v85, s[{52+2*w}:{53+2*w}]")
        for n in range(n_lo, n_hi):
            if n + D < n_hi: issue(n+D)
            for p in [p for p in range(7, -1, -1) if 8*p - n >= -7]:
                d = 8*p - n
                wait({("H", n), ("F", d)})
                c = f"v[{ACC+4*p}:{ACC+4*p+3}]" if p in started else "0"
                started.add(p)
                k(f"v_mfma_f32_16x16x32_bf16 v[{ACC+4*p}:{ACC+4*p+3}], a[{4*(d+7)}:{4*(d+7)+3}], v[{HR+4*(n%4)}:{HR+4*(n%4)+3}], {c}")
        if dterm:
            for p in range(8):
                d = 8*p
                k(f"v_mfma_f32_16x16x32_bf16 v[{ACC+4*p}:{ACC+4*p+3}], a[{4*(d+7)}:{4*(d+7)+3}], v[80:83], v[{ACC+4*p}:{ACC+4*p+3}]")
    conv(0, N0-1, True)
    k("s_branch L_k1_join\nL_k1_w1:")
    for r in range(ACC, ACC+8): k(f"v_mov_b32 v{r}, 0")
    conv(N0-1, 64, False)
    k("L_k1_join:\n;STAMP\ns_nop 7")
    for p in range(8): k(f"ds_write_b128 v13, v[{ACC+4*p}:{ACC+3+4*p}] offset:{1024*p}")
    k(f"""s_mov_b32 s46, 0xffff0000
    s_waitcnt vmcnt(2) lgkmcnt(0)
    s_barrier""")
    for tt in range(2):
        for sw in range(4):
            b = ACC + (tt*4+sw)*4
            k(f"ds_read_b128 v[{b}:{b+3}], v14 offset:{8192*sw+1024*tt}")
    for tt in range(2):
        k(f"s_waitcnt lgkmcnt({4*(1-tt)})")
        b = ACC + tt*16
        for r in range(4):
            x = XE+4*tt+r; q_ = QE+4*tt+r; o = (16*tt + r)*14*1024
            k(f"""v_add_f32 v{b+r}, v{b+r}, v{b+4+r}
            v_add_f32 v{b+8+r}, v{b+8+r}, v{b+12+r}
            v_lshlrev_b32 v24, 16, v{x}
            v_and_b32 v25, s46, v{x}
            v_lshlrev_b32 v26, 16, v{q_}
            v_and_b32 v27, s46, v{q_}
            v_fma_f32 v24, v26, v{b+r}, v24
            v_fma_f32 v25, v27, v{b+8+r}, v25
            v_cvt_pk_bf16_f32 v{80+2*r}, v{b+r}, v{b+8+r}
            v_cvt_pk_bf16_f32 v{81+2*r}, v24, v25
            s_add_u32 s47, s40, {YF+o}
            s_add_u32 s48, s40, {X1F+o}
            buffer_store_dword v{80+2*r}, v7, s[28:31], s47 offen
            buffer_store_dword v{81+2*r}, v7, s[28:31], s48 offen""")
    k("s_branch L_k1_end")
    k(f"""L_k1_cs:
    s_sub_u32 s36, s2, 224
    s_lshl_b32 s36, s36, 2
    s_add_u32 s36, s36, s22
    s_mul_i32 s37, s36, {14*1024}
    s_add_u32 s37, s37, {WQF}""")
    for s_ in range(14):
        if s_ and s_ % 4 == 0: k("s_add_u32 s37, s37, 4096")
        k(f"buffer_load_dwordx4 v[{64+4*s_}:{67+4*s_}], v4, s[28:31], s37 offen offset:{1024*(s_%4)}")
    k("v_mov_b32 v23, 0x3f803f80\nv_mov_b32 v8, 0\nv_mov_b32 v9, 0\ns_waitcnt vmcnt(0)")
    for i in range(56): k(f"v_dot2_f32_bf16 v{8+(i&1)}, v{64+i}, v23, v{8+(i&1)}")
    k("s_nop 2\nv_add_f32 v8, v8, v9")
    xreduce(k, [8], [9])
    k(f"""v_and_b32 v5, 15, v2
    v_lshlrev_b32 v5, 2, v5
    s_lshl_b32 s36, s36, 6
    s_add_u32 s36, s36, {CSO}
    buffer_store_dword v8, v5, s[28:31], s36 offen
    L_k1_end:""")
    k.ts_end()
    k("L_k1_done:")
    return k
```

```python
S, D, H, DH = 2048, 448, 16, 28
MB = 1 << 20
NB = S*D*2
TP = 4224
KVT = 0*MB; X0F = 2*MB; Q0F = 4*MB
CSO = 6*MB; PS = 6*MB + 65536; PS3 = 6*MB + 262144
WQF = 7*MB; WOF = 7*MB + 1376256
YF = 9*MB
FL = 6*MB + 524288
LB = 11*MB; LST = 10*MB
X1F = LB; QF = LB + 2*MB; KF = LB + 4*MB; VF = LB + 6*MB; OF = LB + 8*MB
X3F = X1F + LST; OF2 = OF + LST
WS_BYTES = 31*MB
def perm(g, e): return 4*g+e if e < 4 else 16+4*g+(e-4)
```

```python
from asmgen import *
from layout import *
from common import *
KL = 86016; VL = KL + 24576; AO = KL; PO = AO + 65536; TB = PO + 4096
ACC = 8; GR = 32; WB = 40; CSR = 96; TM = 116
SC = "sc1"

def gen_mega(ts=None):
    k = Kernel("km_kernel", 256, 512, lds=163840, vgpr=160, sgpr=72, agpr=56, ts_idx=ts)
    k.ts_start()
    k(f"""s_cmp_ge_u32 s2, 256
    s_cbranch_scc1 L_km_done
    s_load_dwordx2 s[8:9], s[0:1], 88
    s_load_dwordx2 s[10:11], s[0:1], 72
    v_lshrrev_b32 v1, 6, v0
    v_and_b32 v2, 63, v0
    v_readfirstlane_b32 s22, v1
    s_and_b32 s12, s2, 7
    s_lshl_b32 s17, s12, 1
    s_lshr_b32 s16, s2, 7
    s_add_u32 s17, s17, s16
    s_bfe_u32 s16, s2, 0x40003
    s_mov_b32 s13, 0x24924925
    s_lshr_b32 s14, s2, 3
    s_mul_hi_u32 s18, s14, s13
    s_mul_i32 s19, s18, 7
    s_sub_u32 s19, s14, s19
    s_lshl_b32 s14, s12, 2
    s_add_u32 s18, s18, s14
    v_lshlrev_b32 v3, 4, v2
    ;S93
    s_mov_b32 s20, 0
    s_mov_b32 s15, {FL}
    v_lshrrev_b32 v{TM+31}, 4, v2
    v_and_b32 v{TM+30}, 15, v2
    v_lshlrev_b32 v4, 2, v{TM+31}
    v_sub_u32 v4, v{TM+30}, v4
    v_cmp_eq_u32 s[60:61], 0, v4
    v_cmp_eq_u32 s[62:63], 1, v4
    v_cmp_eq_u32 s[64:65], 2, v4
    v_cmp_eq_u32 s[66:67], 3, v4
    v_cmp_eq_u32 s[68:69], 12, v{TM+30}
    s_waitcnt lgkmcnt(0)
    ;STAMP""")
    LT = TM+30; LG = TM+31
    k.srd(28, 8, WS_BYTES)

    def flag(idx_sreg):
        lab = k.label("L_pub")
        k(f"""s_cmp_lg_u32 s22, 0
        s_cbranch_scc1 {lab}
        s_lshl_b32 s40, {idx_sreg}, 7
        s_add_u32 s40, s40, s15
        v_mov_b32 v4, 1
        v_mov_b32 v5, 0x40000000
        v_cmp_eq_u32 vcc, 0, v2
        s_nop 1
        v_cndmask_b32 v5, v5, 0, vcc
        buffer_store_dword v4, v5, s[28:31], s40 offen sc1
        {lab}:""")
    def poll(setup):
        lab = k.label("L_poll"); done = k.label("L_pd")
        k(f"""s_cmp_lg_u32 s22, 7
        s_cbranch_scc1 {done}""")
        k(setup)
        k(f"""s_mov_b32 s40, 0
        buffer_load_dword v5, v4, s[28:31], s15 offen sc1
        s_sleep 2
        buffer_load_dword v6, v4, s[28:31], s15 offen sc1
        s_sleep 2
        buffer_load_dword v7, v4, s[28:31], s15 offen sc1
        {lab}:""")
        for r in (5, 6, 7):
            k(f"""s_waitcnt vmcnt(2)
            v_cmp_ne_u32 vcc, 1, v{r}
            s_add_u32 s40, s40, 1
            s_nop 0
            s_cbranch_vccz {done}
            buffer_load_dword v{r}, v4, s[28:31], s15 offen sc1""")
        k(f"""s_cmp_lt_u32 s40, 0x100000
        s_cbranch_scc1 {lab}
        {done}:
        s_waitcnt vmcnt(0)
        s_barrier
        s_add_u32 s15, s15, 32768""")
    def w_dma_cs():
        lab = k.label("L_wd")
        k(f"""s_cmp_eq_u32 s22, 7
        s_cbranch_scc1 {lab}
        s_mul_i32 s26, s16, {84*1024}
        s_mul_i32 s27, s22, {12*1024}
        s_add_u32 s26, s26, s27
        s_add_u32 s26, s26, {WQF}""")
        for g in range(3):
            k("s_mov_b32 m0, s27\ns_add_u32 s27, s27, 4096")
            for i in range(4): k(f"buffer_load_dwordx4 v3, s[28:31], s26 offen offset:{1024*i} lds")
            k("s_add_u32 s26, s26, 4096")
        k(f"""{lab}:
        s_mul_i32 s37, s16, {6*64}
        s_add_u32 s37, s37, {CSO}
        v_lshlrev_b32 v4, 4, v{LG}
        v_lshlrev_b32 v7, 2, v{LT}""")
        for t in range(4): k(f"buffer_load_dwordx4 v[{CSR+4*t}:{CSR+4*t+3}], v4, s[28:31], s37 offen offset:{64*t}")
        for t in range(2): k(f"buffer_load_dword v{CSR+16+t}, v7, s[28:31], s37 offen offset:{256+64*t}")
    def x_loads():
        k(f"""s_lshl_b32 s34, s17, 3
        s_add_u32 s34, s34, s22
        s_mul_i32 s34, s34, {14*1024}
        s_add_u32 s34, s34, s20
        s_add_u32 s34, s34, {X1F}""")
        for s in range(14):
            if s and s % 4 == 0: k("s_add_u32 s34, s34, 4096")
            k(f"buffer_load_dwordx4 a[{4*s}:{4*s+3}], v3, s[28:31], s34 offen offset:{1024*(s%4)} {SC}")
    w_dma_cs()
    x_loads()
    k("s_waitcnt vmcnt(14)\ns_barrier\ns_branch L_km_gemm")
    k("L_km_layer:")
    x_loads()
    k("L_km_gemm:\n;STAMP")
    k(f"""v_add_u32 v7, {28*1024}, v3
    s_lshl_b32 s38, s22, 9
    s_add_u32 s38, s38, {TB}
    v_lshl_add_u32 v{TM+28}, v{LT}, 3, s38
    v_lshl_add_u32 v{TM+29}, v{LG}, 5, s38
    v_mov_b32 v{TM+26}, 0x3f803f80""")
    def wrd(s, tiles, nb):
        for i, t in enumerate(tiles):
            b = WB + 16*(s % nb) + 4*i if len(tiles) == 4 else WB + 8*(s % nb) + 4*i
            if t >= 2: k(f"ds_read_b128 v[{b}:{b+3}], v7 offset:{((t-2)*14+s)*1024}")
            else: k(f"ds_read_b128 v[{b}:{b+3}], v3 offset:{(t*14+s)*1024}")
    wrd(0, [2, 3, 4, 5], 3); wrd(1, [2, 3, 4, 5], 3)
    for s in range(14):
        if s < 12: wrd(s+2, [2, 3, 4, 5], 3)
        k(f"s_waitcnt vmcnt({13-s}) lgkmcnt({4*min(2, 13-s)})")
        x = 4*s
        for i in range(4):
            c = ACC+4*i; w = WB+16*(s%3)+4*i
            cc = "0" if s == 0 else f"v[{c}:{c+3}]"
            if i < 2: k(f"v_mfma_f32_16x16x32_bf16 v[{c}:{c+3}], v[{w}:{w+3}], a[{x}:{x+3}], {cc}")
            else: k(f"v_mfma_f32_16x16x32_bf16 v[{c}:{c+3}], a[{x}:{x+3}], v[{w}:{w+3}], {cc}")
        k(f"v_mfma_f32_16x16x32_bf16 v[{GR}:{GR+3}], a[{x}:{x+3}], a[{x}:{x+3}], " + ("0" if s == 0 else f"v[{GR}:{GR+3}]"))
    k.stamp()
    for s in range(3): wrd(s, [0, 1], 4)
    k(f"""s_lshl_b32 s39, s22, 10
    s_add_u32 s40, s39, {KL+16384}
    v_add_u32 v4, s40, v3
    s_lshr_b32 s36, s22, 1
    s_lshl_b32 s37, s36, 11
    s_and_b32 s40, s22, 1
    s_lshl_b32 s40, s40, 3
    s_add_u32 s40, s40, s37
    s_add_u32 s40, s40, {VL+16384}
    v_add_u32 v{TM+27}, s40, v3
    s_add_u32 s40, s39, {VL+16384}
    v_add_u32 v{TM+24}, s40, v3
    s_add_u32 s37, s37, {KL}
    v_add_u32 v{TM+25}, s37, v3
    s_lshl_b32 s26, s16, 17
    s_add_u32 s26, s26, s20
    s_lshl_b32 s27, s17, 13
    s_add_u32 s42, s26, s27
    s_add_u32 s42, s42, s39
    s_add_u32 s43, s42, {VF}
    s_add_u32 s42, s42, {KF}
    v_mov_b32 v{TM}, v{ACC+4}
    v_cndmask_b32 v{TM+1}, 0, v{GR}, s[60:61]
    v_cndmask_b32 v{TM+1}, v{TM+1}, v{GR+1}, s[62:63]
    v_cndmask_b32 v{TM+1}, v{TM+1}, v{GR+2}, s[64:65]
    v_cndmask_b32 v{TM+1}, v{TM+1}, v{GR+3}, s[66:67]""")
    bcast_row3(k, TM, TM+2)
    xreduce(k, [TM+1], [TM+2])
    ln_stats(k, TM, TM+1)
    def fold_t(c, cs, m, o):
        for i in range(8): k(f"v_fma_f32 v{c+i}, -v{m}, v{cs+i}, v{c+i}")
        for i in range(8): k(f"v_mul_f32 v{c+i}, v{c+i}, v{m+1}")
        for i in range(4): k(f"v_cvt_pk_bf16_f32 v{o+i}, v{c+2*i}, v{c+2*i+1}")
    def fold_v(c, cs, tb, o):
        for i in range(4): k(f"v_fma_f32 v{c+i}, -v{tb+2*i}, v{cs}, v{c+i}")
        for i in range(4): k(f"v_mul_f32 v{c+i}, v{c+i}, v{tb+2*i+1}")
        for i in range(2): k(f"v_cvt_pk_bf16_f32 v{o+i}, v{c+2*i}, v{c+2*i+1}")
    k(f"""ds_write_b64 v{TM+28}, v[{TM}:{TM+1}]
    ds_read_b128 v[{TM+8}:{TM+11}], v{TM+29}
    ds_read_b128 v[{TM+12}:{TM+15}], v{TM+29} offset:16""")
    fold_t(ACC, CSR+8, TM, GR)
    k(f"""ds_write_b128 v4, v[{GR}:{GR+3}]
    buffer_store_dwordx4 v[{GR}:{GR+3}], v3, s[28:31], s42 offen {SC}
    s_waitcnt lgkmcnt(1)""")
    for tau in range(2):
        o = GR + 4 + 2*tau
        fold_v(ACC+8+4*tau, CSR+16+tau, TM+8, o)
        if tau == 1:
            for i in range(2): k(f"v_cndmask_b32 v{o+i}, v{o+i}, v{TM+26}, s[68:69]")
        k(f"ds_write_b64 v{TM+27}, v[{o}:{o+1}] offset:{1024*tau}")
    k(f"""s_waitcnt lgkmcnt(0)
    s_barrier
    ds_read_b128 v[{TM+8}:{TM+11}], v{TM+24}
    s_waitcnt lgkmcnt(0)
    buffer_store_dwordx4 v[{TM+8}:{TM+11}], v3, s[28:31], s43 offen {SC}""")
    for s in range(14):
        if s < 11: wrd(s+3, [0, 1], 4)
        if s >= 1: k(f"s_waitcnt lgkmcnt({2*min(3, 13-s)})")
        x = 4*s
        for i in range(2):
            c = ACC+4*i; w = WB+8*(s%4)+4*i
            k(f"v_mfma_f32_16x16x32_bf16 v[{c}:{c+3}], v[{w}:{w+3}], a[{x}:{x+3}], " + ("0" if s == 0 else f"v[{c}:{c+3}]"))
    k(f"""s_lshl_b32 s47, s17, 4
    s_add_u32 s47, s47, s16
    s_waitcnt vmcnt(0)
    s_barrier""")
    flag("s47")
    k.stamp()
    k(f"""s_lshl_b32 s40, s19, 16
    s_lshl_b32 s41, s22, 13
    s_add_u32 s40, s40, s41
    s_add_u32 s40, s40, {WOF}
    s_mov_b32 m0, s41
    s_add_u32 s41, s41, 4096""")
    for i in range(4): k(f"buffer_load_dwordx4 v3, s[28:31], s40 offen offset:{1024*i} lds")
    k("s_add_u32 s40, s40, 4096\ns_mov_b32 m0, s41\ns_nop 0")
    for i in range(4): k(f"buffer_load_dwordx4 v3, s[28:31], s40 offen offset:{1024*i} lds")
    QR = TM + 4
    fold_t(ACC, CSR, TM, QR)
    k(f"""s_lshl_b32 s38, s17, 7
    s_lshl_b32 s39, s36, 5
    s_add_u32 s39, s39, s38
    s_sub_u32 s39, s39, 256
    s_lshl_b32 s40, s22, 4
    s_add_u32 s40, s40, s38
    v_add_u32 v9, s40, v{LT}
    v_lshlrev_b32 v10, 2, v{LG}
    v_add_u32 v10, s39, v10
    v_subrev_u32 v11, 255, v9
    v_max_i32 v11, 0, v11
    v_sub_u32 v11, v11, v10
    v_sub_u32 v9, v9, v10
    v_subrev_u32 v9, 256, v9
    v_mov_b32 v14, 0xf149f2ca""")
    for i in range(8): k(f"v_cmp_ge_i32 s[{44+2*i}:{45+2*i}], {16*(i//4)+i%4}, v11")
    poll(f"""v_and_b32 v4, 1, v2
    s_sub_u32 s41, s17, 2
    v_add_u32 v4, s41, v4
    v_max_i32 v4, 0, v4
    v_lshl_add_u32 v4, v4, 4, s16
    v_lshlrev_b32 v4, 7, v4""")
    k.stamp()
    k(f"""s_lshl_b32 s35, s22, 11
    s_add_u32 s27, s27, s35
    s_sub_u32 s27, s27, 16384
    s_max_i32 s32, s27, 0
    s_add_u32 s32, s32, s26
    s_add_u32 s33, s32, {VF}
    s_add_u32 s32, s32, {KF}
    s_add_u32 s35, s35, {KL}
    s_mov_b32 m0, s35
    s_add_u32 s35, s35, {VL-KL}
    buffer_load_dwordx4 v3, s[28:31], s32 offen {SC} lds
    buffer_load_dwordx4 v3, s[28:31], s32 offen offset:1024 {SC} lds
    s_mov_b32 m0, s35
    s_mov_b32 s41, 0x3e8b97f6
    buffer_load_dwordx4 v3, s[28:31], s33 offen {SC} lds
    buffer_load_dwordx4 v3, s[28:31], s33 offen offset:1024 {SC} lds
    s_waitcnt vmcnt(2)
    s_barrier""")
    A8 = TM + 25; VO = VL - KL
    SR = 24; NR = 9
    for u in range(NR): k(f"ds_read_b128 a[{4*u}:{4*u+3}], v{A8} offset:{1024*u}")
    for u in range(18):
        k(f"s_waitcnt lgkmcnt({min(NR-1, 17-u)})")
        b = 4*(u % NR)
        k(f"v_mfma_f32_16x16x32_bf16 v[{SR+4*u}:{SR+4*u+3}], a[{b}:{b+3}], v[{QR}:{QR+3}], 0")
        if u + NR < 18: k(f"ds_read_b128 a[{b}:{b+3}], v{A8} offset:{1024*(u+NR)}")
    k("s_waitcnt vmcnt(0)\ns_barrier")
    NV = 14
    for j in range(NV): k(f"ds_read_b128 a[{4*j}:{4*j+3}], v{A8} offset:{VO+1024*j}")
    for i in range(8): k(f"v_cndmask_b32 v{SR+i}, v14, v{SR+i}, s[{44+2*i}:{45+2*i}]")
    for i in range(8): k(f"v_cmp_le_i32 s[{44+2*i}:{45+2*i}], {16*(i//4)+i%4}, v9")
    k(f"s_cmp_ge_i32 s39, -32\ns_cbranch_scc1 L_km_noneg")
    for u in range(2, 16, 2):
        k(f"s_cmp_ge_i32 s39, {-16*u}\ns_cbranch_scc1 L_km_noneg")
        for r in range(8): k(f"v_mov_b32 v{SR+4*u+r}, v14")
    k(f"L_km_noneg:")
    for i in range(8): k(f"v_cndmask_b32 v{SR+64+i}, v14, v{SR+64+i}, s[{44+2*i}:{45+2*i}]")
    k(f"v_max3_f32 v15, v{SR}, v{SR+1}, v14\nv_max3_f32 v16, v{SR+2}, v{SR+3}, v14")
    for i in range(4, 72, 4):
        k(f"v_max3_f32 v15, v{SR+i}, v{SR+i+1}, v15\nv_max3_f32 v16, v{SR+i+2}, v{SR+i+3}, v16")
    k("v_max_f32 v15, v15, v16")
    xreduce(k, [15], [16], "v_max_f32")
    k("v_mul_f32 v15, s41, v15\nv_sub_f32 v15, 0, v15")
    PB = 96; OA = 104
    for j in range(9):
        b = SR+8*j; p = PB+4*(j & 1)
        for i in range(8): k(f"v_fma_f32 v{b+i}, v{b+i}, s41, v15")
        for i in range(8): k(f"v_exp_f32 v{b+i}, v{b+i}")
        k("s_nop 0")
        for i in range(4): k(f"v_cvt_pk_bf16_f32 v{p+i}, v{b+2*i}, v{b+2*i+1}")
        k(f"s_waitcnt lgkmcnt({min(NV-2, 16-2*j)})\ns_nop 0")
        for tau in range(2):
            f_ = 2*j+tau; vb = 4*(f_ % NV)
            c = "0" if j == 0 else f"v[{OA+4*tau}:{OA+3+4*tau}]"
            k(f"v_mfma_f32_16x16x32_bf16 v[{OA+4*tau}:{OA+3+4*tau}], a[{vb}:{vb+3}], v[{p}:{p+3}], {c}")
        for tau in range(2):
            f_ = 2*j+tau; vb = 4*(f_ % NV)
            if f_ + NV < 18: k(f"ds_read_b128 a[{vb}:{vb+3}], v{A8} offset:{VO+1024*(f_+NV)}")
    k(f"""s_lshl_b32 s36, s17, 3
    s_add_u32 s36, s36, s22
    s_lshl_b32 s36, s36, 4
    s_add_u32 s36, s36, s16
    s_lshl_b32 s36, s36, 10
    s_add_u32 s36, s36, s20
    s_add_u32 s36, s36, {OF}
    s_lshl_b32 s47, s17, 4
    s_add_u32 s47, s47, s16
    s_nop 2
    v_mov_b32 v17, v{OA+4}""")
    bcast_row3(k, 17, 16)
    k("v_rcp_f32 v17, v17\ns_nop 0")
    for i in range(8): k(f"v_mul_f32 v{OA+i}, v{OA+i}, v17")
    for i in range(4): k(f"v_cvt_pk_bf16_f32 v{PB+i}, v{OA+2*i}, v{OA+2*i+1}")
    k(f"""buffer_store_dwordx4 v[{PB}:{PB+3}], v3, s[28:31], s36 offen {SC}
    s_waitcnt vmcnt(0)
    s_barrier""")
    flag("s47")
    k.stamp()
    k("s_cmp_ge_u32 s2, 224\ns_cbranch_scc1 L_km_p3skip")
    k(f"""s_lshr_b32 s34, s22, 1
    s_and_b32 s35, s22, 1
    s_lshl_b32 s36, s18, 2
    s_add_u32 s36, s36, s34
    s_mul_i32 s38, s36, 14
    s_lshl_b32 s39, s19, 1
    s_add_u32 s39, s39, s35
    s_add_u32 s38, s38, s39
    s_lshl_b32 s38, s38, 10
    s_add_u32 s40, s38, s20
    s_add_u32 s40, s40, {X1F}
    s_add_u32 s41, s38, {YF}
    buffer_load_dwordx4 v[64:67], v3, s[28:31], s40 offen {SC}
    buffer_load_dwordx4 v[72:75], v3, s[28:31], s41 offen""")
    poll(f"""s_lshr_b32 s41, s18, 1
    s_lshl_b32 s41, s41, 4
    v_add_u32 v4, s41, v{LT}
    v_lshlrev_b32 v4, 7, v4""")
    k.stamp()
    k(f"""s_lshl_b32 s26, s18, 16
    s_lshl_b32 s27, s22, 13
    s_add_u32 s26, s26, s27
    s_add_u32 s26, s26, s20
    s_add_u32 s26, s26, {OF}
    s_add_u32 s27, s27, {AO}
    s_mov_b32 m0, s27
    s_add_u32 s27, s27, 4096""")
    for i in range(4): k(f"buffer_load_dwordx4 v3, s[28:31], s26 offen offset:{1024*i} {SC} lds")
    k("s_add_u32 s26, s26, 4096\ns_mov_b32 m0, s27\ns_nop 0")
    for i in range(4): k(f"buffer_load_dwordx4 v3, s[28:31], s26 offen offset:{1024*i} {SC} lds")
    k(f"""s_lshl_b32 s40, s34, 14
    s_add_u32 s40, s40, {AO}
    v_add_u32 v4, s40, v3
    s_lshl_b32 s40, s35, 15
    v_add_u32 v5, s40, v3
    s_mov_b32 s42, 0xffff0000
    s_waitcnt vmcnt(0)
    s_barrier""")
    def rd3(s):
        b = 24 + 12*(s % 3)
        k(f"""ds_read_b128 v[{b}:{b+3}], v4 offset:{1024*s}
        ds_read_b128 v[{b+4}:{b+7}], v5 offset:{1024*s}
        ds_read_b128 v[{b+8}:{b+11}], v5 offset:{16384+1024*s}""")
    rd3(0); rd3(1)
    for s in range(16):
        if s < 14: rd3(s+2)
        k(f"s_waitcnt lgkmcnt({3*min(2, 15-s)})")
        b = 24 + 12*(s % 3)
        for nt in range(2):
            c = 8 + nt*4
            cc = "0" if s == 0 else f"v[{c}:{c+3}]"
            k(f"v_mfma_f32_16x16x32_bf16 v[{c}:{c+3}], v[{b+4+4*nt}:{b+7+4*nt}], v[{b}:{b+3}], {cc}")
    k("s_nop 7")
    for i in range(4):
        c = 8 + 2*i; x = 64+i
        k(f"""v_lshlrev_b32 v28, 16, v{x}
        v_and_b32 v29, s42, v{x}
        v_add_f32 v{c}, v{c}, v28
        v_add_f32 v{c+1}, v{c+1}, v29""")
    k("s_cmp_lg_u32 s20, 0\ns_cbranch_scc1 L_km_final")
    k(f"""v_add_f32 v88, v8, v9
    v_mul_f32 v89, v8, v8
    v_fma_f32 v89, v9, v9, v89""")
    for i in range(2, 8): k(f"v_add_f32 v88, v88, v{8+i}\nv_fma_f32 v89, v{8+i}, v{8+i}, v89")
    k(f"""v_lshlrev_b32 v6, 6, v{LT}
    v_lshl_add_u32 v90, v{LG}, 3, v6
    v_lshl_add_u32 v93, v{LG}, 4, v6
    s_lshl_b32 s40, s34, 10
    s_lshl_b32 s41, s35, 5
    s_add_u32 s40, s40, s41
    s_add_u32 s40, s40, {PO}
    v_add_u32 v90, s40, v90
    v_lshlrev_b32 v91, 6, v2
    v_add_u32 v92, {PO}, v91
    s_lshl_b32 s43, s18, 12
    s_lshl_b32 s41, s19, 3
    s_add_u32 s43, s43, s41
    s_add_u32 s43, s43, {PS}
    s_lshl_b32 s44, s36, 10
    s_add_u32 s44, s44, {PS}
    v_cmp_gt_u32 s[46:47], 3, v{LG}
    ds_write_b64 v90, v[88:89]
    s_waitcnt lgkmcnt(0)
    s_barrier
    s_cmp_lg_u32 s22, 7
    s_cbranch_scc1 L_km_p1""")
    for j in range(4): k(f"ds_read_b128 v[{24+4*j}:{27+4*j}], v92 offset:{16*j}")
    k("s_waitcnt lgkmcnt(0)")
    for st in (8, 4, 2):
        for j in range(st): k(f"v_add_f32 v{24+j}, v{24+j}, v{24+st+j}")
    k(f"""buffer_store_dwordx2 v[24:25], v91, s[28:31], s43 offen sc1
    L_km_p1:
    s_mov_b32 s45, 0
    L_km_poll3:
    buffer_load_dwordx4 v[24:27], v93, s[28:31], s44 offen sc1
    s_add_u32 s45, s45, 1
    s_waitcnt vmcnt(0)
    v_cndmask_b32 v26, 0, v26, s[46:47]
    v_cndmask_b32 v27, 0, v27, s[46:47]
    v_max3_u32 v32, v24, v25, v26
    v_max_u32 v32, v32, v27
    v_cmp_eq_u32 vcc, -1, v32
    s_cmp_gt_u32 s45, 0x80000
    s_cbranch_scc1 L_km_pd3
    s_cbranch_vccnz L_km_poll3
    L_km_pd3:
    v_add_f32 v24, v24, v26
    v_add_f32 v25, v25, v27""")
    xreduce(k, [24, 25], [28, 29])
    ln_stats(k, 24, 25)
    k("v_mul_f32 v24, v24, v25")
    for i in range(4):
        c = 8 + 2*i; y = 72+i
        k(f"""v_lshlrev_b32 v28, 16, v{y}
        v_and_b32 v29, s42, v{y}
        v_fma_f32 v30, v{c}, v25, -v24
        v_fma_f32 v31, v{c+1}, v25, -v24
        v_fma_f32 v{c}, v30, v28, v{c}
        v_fma_f32 v{c+1}, v31, v29, v{c+1}
        v_cvt_pk_bf16_f32 v{80+i}, v{c}, v{c+1}""")
    k(f"""s_add_u32 s40, s38, {X3F}
    buffer_store_dwordx4 v[80:83], v3, s[28:31], s40 offen {SC}
    s_lshl_b32 s47, s18, 3
    s_add_u32 s47, s47, s19
    s_waitcnt vmcnt(0)
    s_barrier""")
    flag("s47")
    k(f"""s_branch L_km_next
    L_km_p3skip:
    s_cmp_lg_u32 s20, 0
    s_cbranch_scc1 L_km_end
    s_add_u32 s15, s15, 32768
    L_km_next:""")
    k.stamp()
    w_dma_cs()
    poll(f"""v_and_b32 v4, 7, v2
    v_min_u32 v4, 6, v4
    v_and_b32 v5, 8, v2
    v_add_u32 v4, v4, v5
    s_lshl_b32 s41, s17, 4
    v_add_u32 v4, s41, v4
    v_lshlrev_b32 v4, 7, v4""")
    k(f"""s_mov_b32 s20, {LST}
    s_branch L_km_layer
    L_km_final:""")
    for i in range(4): k(f"v_cvt_pk_bf16_f32 v{80+i}, v{8+2*i}, v{9+2*i}")
    k.srd(44, 10, NB)
    k(f"""s_movk_i32 s40, 896
    v_mul_lo_u32 v6, v{LT}, s40
    v_lshl_add_u32 v6, v{LG}, 3, v6
    s_mul_i32 s40, s36, {16*896}
    s_lshl_b32 s41, s39, 6
    s_add_u32 s40, s40, s41
    buffer_store_dwordx2 v[80:81], v6, s[44:47], s40 offen
    buffer_store_dwordx2 v[82:83], v6, s[44:47], s40 offen offset:32
    L_km_end:""")
    k.ts_end()
    k("L_km_done:")
    return k
```
